```python
import torch

def _softmax(x, axis=-1):
    return torch.softmax(x, dim=axis)
def _gelu(x):
    return torch.nn.functional.gelu(x, approximate="tanh")
def _silu(x):
    return torch.nn.functional.silu(x)
def _sigmoid(x):
    return torch.sigmoid(x)
def _layernorm(x, axis=-1, eps=1e-5):
    m = x.mean(dim=axis, keepdim=True)
    v = x.var(dim=axis, keepdim=True, unbiased=False)
    return (x - m) / torch.sqrt(v + eps)
def _scatter_add(tgt, idx, src, axis=0):
    return tgt.clone().index_add_(axis, idx, src)
def _segment_sum(src, seg, n):
    out = torch.zeros((n,) + src.shape[1:], dtype=src.dtype)
    return out.index_add_(0, seg, src)
def _pad(x, pw):
    flat = tuple(v for pair in reversed(pw) for v in pair)
    return torch.nn.functional.pad(x, flat)

kernel_name = 'gated_mix__sliding_block_cached__dense_activation_silu__decode'

def setup_inputs():

    _w = (lambda a: (lambda t: t.to(torch.bfloat16) if t.is_floating_point() else t)(torch.as_tensor(a)))
    def _A_setup():
        B, Sq, D = 2, 1, 640
        Hq, Hkv, Sk, Dh = 32, 32, 8192, 128
        assert Hq % Hkv == 0, (Hq, Hkv)
        return {
            "x": _w((lambda *s: torch.randn(*s, dtype=torch.bfloat16) * 0.05)(B, Sq, D)),
            "k_cache": _w((lambda *s: torch.randn(*s, dtype=torch.bfloat16) * 6.4)(B, Hkv, Sk, Dh)),
            "v_cache": _w((lambda *s: torch.randn(*s, dtype=torch.bfloat16) * 0.1)(B, Hkv, Sk, Dh)),
            "wq": _w((lambda *s: torch.randn(*s, dtype=torch.bfloat16) * 6.4)(D, Hq * Dh) * (D ** -0.5)),
            "wo": _w((lambda *s: torch.randn(*s, dtype=torch.bfloat16) * 0.1)(Hq * Dh, D) * ((Hq * Dh) ** -0.5)),
        }
    _A_in = _A_setup()

    def _B_setup():
        B, S, D, F = 2, 1, 640, 1728
        return {
            "x": _w((lambda *s: torch.randn(*s, dtype=torch.bfloat16) * 0.05)(B, S, D)),
            "w1": _w((lambda *s: torch.randn(*s, dtype=torch.bfloat16) * 3.2)(D, F) * (D ** -0.5)),
            "w2": _w((lambda *s: torch.randn(*s, dtype=torch.bfloat16) * 0.05)(F, D) * (F ** -0.5)),
        }
    _B_in = _B_setup()

    return {
        "A_x": _A_in["x"],
        "A_k_cache": _A_in["k_cache"],
        "A_v_cache": _A_in["v_cache"],
        "A_wq": _A_in["wq"],
        "A_wo": _A_in["wo"],
        "B_x": _B_in["x"],
        "B_w1": _B_in["w1"],
        "B_w2": _B_in["w2"],
        "gate_w": _w((lambda *s: torch.randn(*s, dtype=torch.bfloat16) * 0.05)(640) * 16.0),
    }

def reference(A_x, A_k_cache, A_v_cache, A_wq, A_wo, B_x, B_w1, B_w2, gate_w):
    def _A_ref(x, k_cache, v_cache, wq, wo):
        B, Sq, D = x.shape
        Hq, Dh = 32, 128
        Hkv, Sk = k_cache.shape[1], k_cache.shape[2]
        W = min(4096, max(256, Sk // 4))
        rep = Hq // Hkv
        q = (lambda x, *d: x.permute(*d))((x @ wq).reshape(B, Sq, Hq, Dh), 0, 2, 1, 3)
        k = (lambda x, n, axis: torch.repeat_interleave(x, n, dim=axis))(k_cache[:, :, Sk - W:, :], rep, axis=1)
        v = (lambda x, n, axis: torch.repeat_interleave(x, n, dim=axis))(v_cache[:, :, Sk - W:, :], rep, axis=1)
        scores = torch.einsum("bhqd,bhkd->bhqk", q, k) * (Dh ** -0.5)
        p = _softmax(scores, axis=-1)
        o = torch.einsum("bhqk,bhkd->bhqd", p, v)
        return (lambda x, *d: x.permute(*d))(o, 0, 2, 1, 3).reshape(B, Sq, Hq * Dh) @ wo

    def _B_ref(x, w1, w2):
        h = torch.einsum("bsd,df->bsf", x, w1)
        h = _silu(h)
        out = torch.einsum("bsf,fd->bsd", h, w2)
        return out

    x = A_x
    g = _sigmoid((x * gate_w).sum(-1, keepdims=True))
    a = _A_ref(x, A_k_cache, A_v_cache, A_wq, A_wo)
    b = _B_ref(x, B_w1, B_w2)
    return g * a + (1 - g) * b
```

```python
import re

TRANS = ("v_exp_f32", "v_log_f32", "v_rcp_f32", "v_rsq_f32", "v_sqrt_f32", "v_sin_f32", "v_cos_f32", "v_rcp_iflag_f32")
RMW = ("v_fmac_", "v_dot2c_", "v_pk_fmac")
CAP = 20

def _regs(tok):
    tok = tok.strip()
    m = re.fullmatch(r"-?\|?([vsa])\[(\d+):(\d+)\]\|?", tok)
    if m:
        return m.group(1), list(range(int(m.group(2)), int(m.group(3)) + 1))
    m = re.fullmatch(r"-?\|?([vsa])(\d+)\|?", tok)
    if m:
        return m.group(1), [int(m.group(2))]
    if tok in ("vcc", "vcc_lo", "vcc_hi"):
        return "s", ["vcc"]
    if tok in ("exec", "exec_lo", "exec_hi"):
        return "s", ["exec"]
    return None, []

class Ins:
    def __init__(self, text):
        self.text = text
        t = text.split(";")[0].strip()
        self.label = t[:-1] if t.endswith(":") and " " not in t else None
        self.directive = t.startswith(".") and self.label is None
        self.op = "" if (self.label or self.directive or not t) else t.split()[0]
        self.vw, self.vr, self.sw, self.sr = set(), set(), set(), set()
        self.mfma_c = set()
        self.ab = set()
        if not self.op:
            return
        rest = t[len(self.op):]
        ops = [o.strip() for o in re.split(r",(?![^\[]*\])", rest)]
        last = ops[-1].split() if ops and ops[-1] else []
        mods = " ".join(last[1:])
        if last:
            ops[-1] = last[0]
        self.mods = mods
        self.dpp = any(k in t for k in ("row_shl", "row_shr", "row_ror", "row_newbcast", "row_bcast", "row_mirror", "row_half_mirror", "quad_perm"))
        op = self.op
        R = [_regs(o) for o in ops]
        def rd(i):
            k, r = R[i]
            (self.vr if k == "v" else self.sr if k == "s" else set()).update(r)
        def wr(i):
            k, r = R[i]
            (self.vw if k == "v" else self.sw if k == "s" else set()).update(r)
        self.valu = op.startswith("v_") and not op.startswith("v_mfma")
        self.mfma = op.startswith("v_mfma")
        self.vmem = op.startswith(("buffer_", "global_"))
        self.ds = op.startswith("ds_")
        self.trans = any(op.startswith(x) for x in TRANS)
        self.wide_store = False
        if self.mfma:
            wr(0); rd(1); rd(2); rd(3)
            self.ab = set(R[1][1]) | set(R[2][1])
            if R[3][0] == "v":
                self.mfma_c = set(R[3][1])
            self.d = tuple(R[0][1]); self.c = tuple(R[3][1]) if R[3][0] == "v" else None
        elif op.startswith("v_permlane"):
            wr(0); wr(1); rd(0); rd(1)
        elif op.startswith("v_cmp"):
            wr(0)
            for i in range(1, len(R)): rd(i)
        elif op.startswith(("v_add_co", "v_addc_co", "v_sub_co")):
            wr(0); wr(1)
            for i in range(2, len(R)): rd(i)
        elif self.valu:
            wr(0)
            for i in range(1, len(R)): rd(i)
            if any(op.startswith(x) for x in RMW) or self.dpp:
                rd(0)
            if op.startswith("v_cndmask") and len(R) == 3:
                self.sr.add("vcc")
        elif self.ds:
            if op.startswith("ds_read") or op.startswith("ds_bpermute") or op.startswith("ds_swizzle"):
                wr(0)
                for i in range(1, len(R)): rd(i)
            else:
                for i in range(len(R)): rd(i)
        elif self.vmem:
            if "load" in op or ("atomic" in op and "sc0" in mods):
                wr(0)
                for i in range(1, len(R)): rd(i)
            else:
                for i in range(len(R)): rd(i)
                if "dwordx4" in op or "dwordx3" in op:
                    self.wide_store = True
                    di = 0 if op.startswith("buffer_") else 1
                    self.store_data = set(R[di][1])
        elif op.startswith("s_"):
            if op.startswith(("s_cmp", "s_cbranch", "s_branch", "s_waitcnt", "s_nop", "s_barrier", "s_endpgm", "s_sleep", "s_setprio")):
                for i in range(len(R)): rd(i)
            else:
                wr(0)
                for i in range(1, len(R)): rd(i)
        self.branch = None
        if op.startswith(("s_cbranch", "s_branch")):
            self.branch = ops[0]
        self.uncond = op in ("s_branch", "s_endpgm")
        self.slots = 1
        if op == "s_nop":
            self.slots = int(ops[0], 0) + 1

def need(ins, st):
    n = 0
    def chk(key, req):
        nonlocal n
        if key in st:
            n = max(n, req - st[key])
    if not ins.op:
        return 0
    if ins.mfma:
        for r in ins.vr:
            chk(("vw", r), 2)
        for r in ins.ab:
            chk(("mw", r), 8)
        for r in ins.mfma_c:
            if ("mw", r) in st:
                same = st.get(("md", r)) is not None and MD.get(r) == ins.c
                if not same:
                    chk(("mw", r), 6)
        for r in ins.vw:
            if r not in ins.mfma_c and ("mw", r) in st:
                chk(("mw", r), 8)
        chk(("xw",), 4)
    if ins.valu:
        for r in ins.vr | ins.vw:
            chk(("mw", r), 8)
        for r in ins.vw:
            chk(("mc", r), 3)
            chk(("sd", r), 2)
        if ins.dpp:
            for r in ins.vr:
                chk(("vw", r), 2)
            chk(("xw",), 5)
        if not ins.trans:
            for r in ins.vr:
                chk(("tw", r), 1)
        else:
            for r in ins.vr:
                chk(("tw", r), 1)
        if ins.op.startswith(("v_readlane", "v_readfirstlane")):
            for r in ins.vr:
                chk(("vw", r), 1)
        if ins.op.startswith("v_permlane"):
            for r in ins.vr:
                chk(("vw", r), 2)
        for r in ins.sr:
            chk(("sw", r), 4 if ins.op.startswith(("v_readlane", "v_writelane")) else 2)
    if ins.vmem or ins.ds:
        for r in ins.vr | ins.vw:
            chk(("mw", r), 8)
        for r in ins.vr:
            chk(("tw", r), 1)
        for r in ins.sr:
            chk(("sw", r), 5)
        for r in ins.vw:
            chk(("sd", r), 1)
    return max(n, 0)

MD = {}

def age(st, k):
    return {key: a + k for key, a in st.items() if a + k < CAP}

def apply(ins, st):
    st = age(st, ins.slots) if ins.op else dict(st)
    if not ins.op:
        return st
    if ins.valu:
        for r in ins.vw:
            st[("vw", r)] = 0
            st.pop(("tw", r), None)
            if ins.trans:
                st[("tw", r)] = 0
        for r in ins.sw:
            st[("sw", r)] = 0
            if r == "exec":
                st[("xw",)] = 0
    if ins.mfma:
        for r in ins.vw:
            st[("mw", r)] = 0
            st[("md", r)] = 0
            MD[r] = ins.d
        for r in ins.mfma_c:
            st[("mc", r)] = 0
    if ins.vmem and ins.wide_store:
        for r in ins.store_data:
            st[("sd", r)] = 0
    if ins.op.startswith("s_") and not ins.branch:
        for r in ins.sw:
            st.pop(("sw", r), None)
    return st

def merge(a, b):
    if a is None: return None if b is None else dict(b)
    if b is None: return dict(a)
    out = dict(a)
    for k, v in b.items():
        out[k] = min(v, out.get(k, 99))
    return out

class Asm:
    def __init__(self):
        self.lines = []
    def __call__(self, text):
        for t in text.strip("\n").split("\n"):
            t = t.strip()
            if t:
                self.lines.append(t)
    def finish(self):
        ins = [Ins(t) for t in self.lines]
        nops = [0] * len(ins)
        saved = {}
        for _ in range(12):
            changed = False
            cur = {}
            for i, x in enumerate(ins):
                if x.label:
                    cur = merge(cur, saved.get(x.label))
                    continue
                if cur is None or not x.op:
                    continue
                st = age(cur, nops[i]) if nops[i] else cur
                k = need(x, st)
                if k > 0:
                    nops[i] += k
                    st = age(st, k)
                    changed = True
                cur = apply(x, st)
                if x.branch:
                    m = merge(saved.get(x.branch), cur)
                    if m != saved.get(x.branch):
                        saved[x.branch] = m
                        changed = True
                if x.uncond:
                    cur = None
            if not changed:
                break
        out = []
        for i, x in enumerate(ins):
            k = nops[i]
            while k > 0:
                c = min(k, 16)
                out.append(f"    s_nop {c-1}")
                k -= c
            if x.label or x.directive or x.text.startswith(";"):
                out.append(x.text)
            else:
                out.append("    " + x.text)
        self.nnops = sum(nops)
        return "\n".join(out) + "\n"
```

```python
import sys
from asmlib import Asm

KN = "gated_mix__sliding_block_cached__dense_activation_silu__decode_kernel"

MB0 = 0x1000
MBA = 0x81000
MBB = 0xC1000
MBEND = 0xF1000
OOB = 0x40000000

L_PART = 0
L_OPART = 24576
L_MSG = L_OPART + 16 * 528
L_Q = L_MSG + 8 * 528
L_ZERO = L_Q + 256
L_QFLAG = L_ZERO + 16
L_OCNT = L_ZERO + 20
L_HACT = L_ZERO + 32
L_WMAX = L_HACT + 512
L_GATE = L_WMAX + 64
L_YPART = L_GATE + 16
LDS_BYTES = L_YPART + 8 * 1024

vL, vM, vKo, vVo = 1, 2, 6, 7
T = 8
vg, vr = 9, 10
K, V, P0, F = 16, 48, 80, 96
vYW, vPB, vOUT, vP0a = 84, 85, 86, 87
vHF, vMx, vN, G, vWo, vW2 = 88, 90, 91, 92, 94, 95
sK, sV, sWQ, sW1, sX, sWO, sW2, sMB, sOUT, sG = 28, 32, 36, 40, 44, 48, 52, 56, 60, 64
sTA, sTB, sKV, sMK = 68, 69, 70, 71
sO3, sOdd, sRmax = 72, 73, 74
sH, sJ, sB, sS, sW, sN = 76, 77, 78, 79, 80, 81
sExB = 78
sE = 82
sC = 86
sCnt, sT0, sT1, sT2 = 88, 89, 90, 91
sX0, sX1 = 92, 93
sL2E, sSC, sHI = 94, 95, 96
SPIN = 50000
FULL = (1 << 64) - 1

def q(r, n=4):
    return f"v[{r}:{r+n-1}]"
def sq(r, n=4):
    return f"s[{r}:{r+n-1}]"

def gen(prof=False, flag="nt", spin=SPIN, leak=0, depthA=1, depthB=1, sleepA=2, sleepB=2, outflag="", prio=True, nk0=8, leakat="end", touch=None):
    a = Asm()
    stamp_id = [0]
    names = []
    def stamp(name):
        if leak and name == leakat:
            a("s_memrealtime s[100:101]")
        if prof and (prof is True or name in prof):
            if name in names:
                i = names.index(name)
            else:
                i = stamp_id[0]; stamp_id[0] += 1
                names.append(name)
            assert i < 11
            a(f"s_memrealtime s[{4+2*i}:{5+2*i}]")

    def srd(dst, lo, off, nrec):
        if off is None:
            a(f"s_mov_b64 s[{dst}:{dst+1}], s[{lo}:{lo+1}]")
        else:
            a(f"s_add_u32 s{dst}, s{lo}, {off}")
            a(f"s_addc_u32 s{dst+1}, s{lo+1}, 0")
        a(f"s_mov_b32 s{dst+2}, {nrec}")
        a(f"s_mov_b32 s{dst+3}, 0x20000")

    def embed(r):
        for k in range(4):
            a(f"v_perm_b32 v{r+k}, v{r+k}, v{vN}, s{sE+k}")

    def tagbits(r, t0, t1):
        a(f"v_perm_b32 v{t0}, v{r+1}, v{r}, s{sC}")
        a(f"v_perm_b32 v{t1}, v{r+3}, v{r+2}, s{sC+1}")
        a(f"v_or_b32 v{t0}, v{t0}, v{t1}")

    def untag(r, n=4, dst=None):
        for k in range(n):
            a(f"v_and_b32 v{(dst if dst is not None else r)+k}, s{sMK}, v{r+k}")

    def setexec(m):
        lo, hi = m & 0xffffffff, m >> 32
        if m == FULL:
            a("s_mov_b64 exec, -1")
        elif hi == 0 and lo <= 64:
            a(f"s_mov_b64 exec, {lo}")
        else:
            a(f"s_mov_b32 exec_lo, {hex(lo)}")
            a(f"s_mov_b32 exec_hi, {hex(hi)}")

    RED = ("quad_perm:[1,0,3,2] row_mask:0xf bank_mask:0xf", "quad_perm:[2,3,0,1] row_mask:0xf bank_mask:0xf",
           "row_half_mirror row_mask:0xf bank_mask:0xf", "row_mirror row_mask:0xf bank_mask:0xf",
           "row_bcast:15 row_mask:0xa bank_mask:0xf", "row_bcast:31 row_mask:0xc bank_mask:0xf")
    def wave_reduce(op, r):
        for m in RED:
            a(f"{op}_dpp v{r}, v{r}, v{r} {m}")

    def lds_sum16(acc, buf, vaddr, base, stride, halves=2):
        for half in range(halves):
            for k in range(8):
                a(f"ds_read_b128 {q(buf+4*k)}, v{vaddr} offset:{base + (8*half+k)*stride}")
            first = 0
            if half == 0:
                a("s_waitcnt lgkmcnt(6)")
                a(f"v_pk_add_f32 {q(acc,2)}, {q(buf,2)}, {q(buf+4,2)}")
                a(f"v_pk_add_f32 {q(acc+2,2)}, {q(buf+2,2)}, {q(buf+6,2)}")
                first = 2
            for k in range(first, 8):
                a(f"s_waitcnt lgkmcnt({7-k})")
                a(f"v_pk_add_f32 {q(acc,2)}, {q(acc,2)}, {q(buf+4*k,2)}")
                a(f"v_pk_add_f32 {q(acc+2,2)}, {q(acc+2,2)}, {q(buf+4*k+2,2)}")

    def kv_loads(base, voff, srdreg):
        for n in range(8):
            so = sTA if n < 4 else sTB
            a(f"buffer_load_dwordx4 {q(base+4*n)}, v{voff}, {sq(srdreg)}, s{so} offen offset:{1024*(n%4)} {flag}")

    def lds_spin(label, off, target, sleep):
        a(f"v_mov_b32 v{F+28}, 0")
        a(f"s_mov_b32 s{sCnt}, {spin*40}")
        a(f"L_{label}:")
        a(f"ds_read_b32 v{F+29}, v{F+28} offset:{off}")
        a("s_waitcnt lgkmcnt(0)")
        a(f"v_readfirstlane_b32 s{sT0}, v{F+29}")
        a(f"s_cmp_ge_u32 s{sT0}, {target}")
        a(f"s_cbranch_scc1 L_{label}_ok")
        if sleep:
            a(f"s_sleep {sleep}")
        a(f"s_sub_u32 s{sCnt}, s{sCnt}, 1")
        a(f"s_cbranch_scc0 L_{label}")
        a(f"L_{label}_ok:")

    a(f"{KN}:")
    a("s_cmp_ge_u32 s2, 256")
    a("s_cbranch_scc1 L_end")
    if prof or leak:
        a("s_memrealtime s[98:99]")
    a("s_load_dwordx16 s[4:19], s[0:1], 0")
    a("s_load_dwordx8 s[20:27], s[0:1], 64")
    a(f"v_lshrrev_b32 v{T}, 6, v0")
    a(f"v_and_b32 v{vL}, 63, v0")
    a(f"v_readfirstlane_b32 s{sW}, v{T}")
    a(f"s_and_b32 s{sH}, s2, 7")
    a(f"s_bfe_u32 s{sT0}, s2, 0x20003")
    a(f"s_lshl3_add_u32 s{sH}, s{sT0}, s{sH}")
    a(f"s_lshr_b32 s{sJ}, s2, 5")
    a(f"v_lshrrev_b32 v{vg}, 4, v{vL}")
    a(f"v_and_b32 v{vr}, 15, v{vL}")
    a(f"v_lshl_add_u32 v{T+3}, s{sW}, 2, v{vg}")
    a(f"v_lshlrev_b32 v{T+4}, 13, v{T+3}")
    a(f"v_lshl_add_u32 v{T+4}, v{vr}, 4, v{T+4}")
    a(f"v_add_u32 v{T+5}, {64*8192}, v{T+4}")
    a(f"v_mul_u32_u24 v{T+6}, 3456, v{T+3}")
    a(f"v_lshl_add_u32 v{T+6}, v{vr}, 4, v{T+6}")
    a(f"v_mov_b32 v{T+7}, {hex(OOB)}")
    a(f"v_cmp_gt_u32 vcc, 8, v{vr}")
    a(f"s_mul_i32 s{sT0}, s{sJ}, 80")
    a(f"s_mul_i32 s{sT1}, s{sJ}, {80*8192}")
    a(f"v_cndmask_b32 v{T+6}, v{T+7}, v{T+6}, vcc")
    a(f"v_add_u32 v{T+7}, {64*3456}, v{T+6}")
    xo = V + 18
    a(f"v_add_u32 v{xo}, s{sT0}, v{T+3}")
    a(f"v_bfe_u32 v{xo+1}, v{vL}, 3, 1")
    a(f"v_mul_u32_u24 v{xo+1}, 640, v{xo+1}")
    a(f"v_add_lshl_u32 v{xo}, v{xo}, v{xo+1}, 1")
    a(f"s_lshl_b32 s{sT2}, s{sH}, 8")
    a(f"s_add_u32 s{sT1}, s{sT1}, s{sT2}")
    a(f"s_mul_i32 s{sT2}, s{sJ}, {80*3456}")
    a(f"s_lshl_b32 s{sX0}, s{sH}, 7")
    a(f"s_add_u32 s{sT2}, s{sT2}, s{sX0}")
    a(f"s_cmp_lt_u32 s{sH}, 27")
    a(f"s_cselect_b32 s{sX0}, {79*3456+128}, 0")
    a(f"s_cselect_b32 s{sX1}, {63*1280+192}, 0")
    a(f"s_lshr_b32 s{sB}, s{sJ}, 2")
    a(f"s_lshl_b32 s{sKV}, s{sB}, 5")
    a(f"s_add_u32 s{sKV}, s{sKV}, s{sH}")
    a(f"s_lshl_b32 s{sKV}, s{sKV}, 4")
    a(f"s_and_b32 s{sS}, s{sJ}, 3")
    a(f"s_add_u32 s{sKV}, s{sKV}, s{sS}")
    a(f"s_add_u32 s{sKV}, s{sKV}, 12")
    a(f"s_lshl4_add_u32 s{sKV}, s{sKV}, s{sW}")
    a(f"s_lshl_b32 s{sKV}, s{sKV}, 13")
    a("s_waitcnt lgkmcnt(0)")
    if leak:
        stamp("kern0")
    if prof:
        a("s_memrealtime s[100:101]")
    if touch is not None:
        a(f"s_cmp_eq_u32 s{sW}, {touch}")
        a("s_cbranch_scc0 L_notouch")
        a(f"v_mov_b32 v{F}, 0")
        a(f"s_add_u32 s28, s6, s{sKV}"); a("s_addc_u32 s29, s7, 0")
        a(f"s_add_u32 s30, s8, s{sKV}"); a("s_addc_u32 s31, s9, 0")
        a(f"s_mul_i32 s34, s{sH}, {128*1280}"); a("s_add_u32 s32, s12, s34"); a("s_addc_u32 s33, s13, 0")
        a(f"s_mul_i32 s34, s{sH}, {64*1280}"); a(f"s_cmp_lt_u32 s{sH}, 27"); a("s_cselect_b32 s34, s34, 0"); a("s_add_u32 s36, s18, s34"); a("s_addc_u32 s37, s19, 0")
        setexec(1)
        a(f"global_load_dword v{F+1}, v{F}, s[28:29] nt")
        a(f"global_load_dword v{F+2}, v{F}, s[30:31] nt")
        a(f"global_load_dword v{F+3}, v{F}, s[32:33] nt")
        a(f"global_load_dword v{F+4}, v{F}, s[36:37] nt")
        a(f"global_load_dword v{F+5}, v{F}, s[26:27] offset:2048 nt")
        a(f"global_load_dword v{F+6}, v{F}, s[22:23] nt")
        setexec(FULL)
        a("L_notouch:")
    srd(sX, 4, None, 2560)
    srd(sWQ, 10, f"s{sT1}", 79*8192+256)
    srd(sW1, 16, f"s{sT2}", f"s{sX0}")
    x0, x1 = V + 16, V + 17
    wq0, w10, wq1, w11 = V, V + 4, V + 8, V + 12
    a(f"buffer_load_dwordx4 {q(wq0)}, v{T+4}, {sq(sWQ)}, 0 offen {flag}")
    a(f"buffer_load_dwordx4 {q(w10)}, v{T+6}, {sq(sW1)}, 0 offen {flag}")
    setexec(0x0101010101010101)
    a(f"buffer_load_ushort v{x0}, v{xo}, {sq(sX)}, 0 offen")
    setexec(FULL)
    a("s_load_dword s97, s[26:27], 0")
    a(f"s_cmp_ge_u32 s{sW}, 4")
    a("s_cbranch_scc1 L_notile1")
    a(f"buffer_load_dwordx4 {q(wq1)}, v{T+5}, {sq(sWQ)}, 0 offen {flag}")
    a(f"buffer_load_dwordx4 {q(w11)}, v{T+7}, {sq(sW1)}, 0 offen {flag}")
    setexec(0x0101010101010101)
    a(f"buffer_load_ushort v{x1}, v{xo}, {sq(sX)}, 0 offen offset:128")
    setexec(FULL)
    a("L_notile1:")
    gx, gw = F + 16, F + 24
    a(f"s_cmp_lt_u32 s{sW}, 14")
    a("s_cbranch_scc1 L_nogate_ld")
    srd(sG, 20, None, 1280)
    a(f"s_sub_u32 s{sT1}, s{sW}, 14")
    a(f"s_mul_i32 s{sT1}, s{sT1}, 1280")
    a(f"v_lshlrev_b32 v{F+29}, 4, v{vL}")
    a(f"v_lshlrev_b32 v{F+30}, 2, v{vL}")
    a(f"buffer_load_dwordx4 {q(gx)}, v{F+29}, {sq(sX)}, s{sT1} offen")
    a(f"buffer_load_dword v{gx+4}, v{F+30}, {sq(sX)}, s{sT1} offen offset:1024")
    a(f"buffer_load_dwordx4 {q(gw)}, v{F+29}, {sq(sG)}, 0 offen")
    a(f"buffer_load_dword v{gw+4}, v{F+30}, {sq(sG)}, 0 offen offset:1024")
    a("L_nogate_ld:")
    srd(sK, 6, f"s{sKV}", 8192)
    a(f"v_lshrrev_b32 v{T+3}, 2, v{vr}")
    a(f"v_lshlrev_b32 v{T+3}, 8, v{T+3}")
    a(f"v_lshl_add_u32 v{T+3}, v{vg}, 6, v{T+3}")
    a(f"v_and_b32 v{T+4}, 3, v{vL}")
    a(f"v_lshl_add_u32 v{vKo}, v{T+4}, 4, v{T+3}")
    a(f"v_lshlrev_b32 v{vVo}, 4, v{vL}")
    a(f"s_lshr_b32 s{sT0}, s2, 3")
    a(f"s_lshr_b32 s{sT1}, s{sW}, 1")
    a(f"s_add_u32 s{sT0}, s{sT0}, s{sT1}")
    a(f"s_and_b32 s{sT0}, s{sT0}, 1")
    a(f"s_lshl_b32 s{sTA}, s{sT0}, 12")
    a(f"s_xor_b32 s{sTB}, s{sTA}, 4096")
    a("s_barrier")
    if leak:
        stamp("B0")
    a(f"s_cmp_ge_u32 s{sW}, {nk0}")
    a("s_cbranch_scc1 L_noK0")
    kv_loads(K, vKo, sK)
    a("L_noK0:")
    srd(sV, 8, f"s{sKV}", 8192)
    srd(sMB, 26, None, MBEND)
    a(f"s_and_b32 s{sOdd}, s{sJ}, 1")
    a(f"s_mul_i32 s{sT1}, s{sJ}, 160")
    a(f"s_lshl_b32 s{sT2}, s{sOdd}, 5")
    a(f"s_add_u32 s{sT1}, s{sT1}, s{sT2}")
    a(f"s_mul_i32 s{sT0}, s{sH}, {128*1280}")
    a(f"s_add_u32 s{sT0}, s{sT0}, s{sT1}")
    srd(sWO, 12, f"s{sT0}", 127*1280+192)
    a(f"s_mul_i32 s{sT0}, s{sH}, {64*1280}")
    a(f"s_add_u32 s{sT0}, s{sT0}, s{sT1}")
    srd(sW2, 18, f"s{sT0}", f"s{sX1}")
    a(f"s_lshl_b32 s{sT2}, s{sOdd}, 2")
    a(f"s_sub_u32 s{sRmax}, 12, s{sT2}")
    srd(sOUT, 22, None, 2560)
    if prof:
        a("s_waitcnt lgkmcnt(0)")
        a("s_mov_b64 s[4:5], s[98:99]"); a("s_mov_b64 s[6:7], s[100:101]")
        stamp_id[0] = 2; names.append("start"); names.append("kern")
    for k in range(4):
        a(f"s_mov_b32 s{sE+k}, {hex(0x07060500 | k)}")
    a(f"s_mov_b32 s{sC}, 0x0c0c0400")
    a(f"s_mov_b32 s{sC+1}, 0x04000c0c")
    a(f"s_mov_b32 s{sL2E}, 0x3fb8aa3b")
    a(f"s_mov_b32 s{sSC}, 0x3db504f3")
    a(f"s_mov_b32 s{sHI}, 0xffff0000")
    a(f"s_mov_b32 s{sMK}, 0xffffff00")
    a(f"s_mov_b32 s{sX0}, {4*1280}")
    a(f"s_mov_b32 s{sX1}, {8*1280}")
    a(f"s_mov_b32 s{sO3}, {12*1280}")
    a(f"v_and_b32 v{T+3}, 1, v{vL}")
    a(f"v_lshlrev_b32 v{T+3}, 4, v{T+3}")
    a(f"v_mov_b32 v{T+4}, 0xffff")
    a(f"v_lshlrev_b32 v{T+4}, v{T+3}, v{T+4}")
    a(f"v_bfe_u32 v{T+3}, v{vL}, 1, 2")
    for jj in range(4):
        a(f"v_cmp_eq_u32 vcc, {jj}, v{T+3}")
        a(f"v_cndmask_b32 v{vM+jj}, 0, v{T+4}, vcc")
    a(f"v_mov_b32 v{T+4}, {hex(OOB)}")
    a(f"v_lshlrev_b32 v{T+3}, 4, v{vr}")
    a(f"v_cmp_gt_u32 vcc, s{sRmax}, v{vr}")
    a(f"s_mul_i32 s{sT0}, s{sW}, {16*1280}")
    a(f"s_mul_i32 s{sT1}, s{sW}, {8*1280}")
    a(f"v_cndmask_b32 v{T+3}, v{T+4}, v{T+3}, vcc")
    a(f"v_mul_u32_u24 v{T+4}, 1280, v{vg}")
    a(f"v_add_u32 v{T+3}, v{T+3}, v{T+4}")
    a(f"v_add_u32 v{vWo}, s{sT0}, v{T+3}")
    a(f"v_add_u32 v{vW2}, s{sT1}, v{T+3}")
    a(f"s_and_b32 s{sT0}, s{sW}, 3")
    a(f"s_lshl_b32 s{sT0}, s{sT0}, 7")
    a(f"s_lshl_b32 s{sT1}, s{sH}, 14")
    a(f"s_add_u32 s{sT0}, s{sT0}, s{sT1}")
    a(f"s_lshl_b32 s{sT1}, s{sB}, 9")
    a(f"s_cmp_lt_u32 s{sW}, 4")
    a(f"s_cselect_b32 s{sT1}, 1024, s{sT1}")
    a(f"s_add_u32 s{sT0}, s{sT0}, s{sT1}")
    a(f"s_add_u32 s{sT0}, s{sT0}, {MB0}")
    a(f"v_and_b32 v{T+3}, 7, v{vL}")
    a(f"v_lshlrev_b32 v{T+3}, 11, v{T+3}")
    a(f"v_lshrrev_b32 v{T+4}, 3, v{vL}")
    a(f"v_lshl_add_u32 v{T+3}, v{T+4}, 4, v{T+3}")
    a(f"v_add_u32 v{vP0a}, s{sT0}, v{T+3}")
    a(f"s_lshl3_add_u32 s{sT1}, s{sH}, s{sJ}")
    a(f"s_lshl_b32 s{sT1}, s{sT1}, 11")
    a(f"s_lshl_b32 s{sT0}, s{sW}, 10")
    a(f"s_add_u32 s{sT1}, s{sT1}, s{sT0}")
    a(f"s_add_u32 s{sT1}, s{sT1}, {MB0}")
    a(f"v_add_u32 v{vYW}, s{sT1}, v{vVo}")
    a(f"v_add_u32 v{vPB}, s{sT0}, v{vVo}")
    a(f"s_mul_i32 s{sT0}, s{sW}, 1536")
    a(f"v_and_b32 v{T+3}, 7, v{vL}")
    a(f"v_lshl_add_u32 v{T+3}, v{vg}, 5, v{T+3}")
    a(f"v_lshl_add_u32 v{T+3}, v{T+3}, 2, s{sT0}")
    a(f"v_bfe_u32 v{T+4}, v{vL}, 3, 1")
    a(f"v_lshl_add_u32 v{T+5}, v{T+4}, 9, v{T+3}")
    a(f"v_lshl_add_u32 v{T+6}, v{T+4}, 8, v{T+3}")
    a(f"s_cmp_eq_u32 s{sW}, 2")
    a("s_cbranch_scc0 L_nozero")
    a(f"v_mov_b32 v{T+3}, 0")
    a(f"v_lshlrev_b32 v{T+4}, 2, v{vL}")
    setexec(0xff)
    a(f"ds_write_b32 v{T+4}, v{T+3} offset:{L_ZERO}")
    setexec(FULL)
    a("L_nozero:")

    Dq, Dh, B0, B1 = F, F + 4, F + 8, F + 12
    a(f"s_cmp_ge_u32 s{sW}, {nk0}")
    a("s_cbranch_scc1 L_w1late")
    a("s_waitcnt vmcnt(8)")
    a("s_branch L_w1ok")
    a("L_w1late:")
    a("s_waitcnt vmcnt(0)")
    a("L_w1ok:")
    stamp("w_in")
    def xbcast(x):
        a(f"v_lshl_or_b32 v{x}, v{x}, 16, v{x}")
        a(f"v_mov_b32_dpp v{x}, v{x} row_newbcast:0 row_mask:0xf bank_mask:0x3")
        a(f"v_mov_b32_dpp v{x}, v{x} row_newbcast:8 row_mask:0xf bank_mask:0xc")
    xbcast(x0)
    for jj in range(4):
        a(f"v_and_b32 v{B0+jj}, v{x0}, v{vM+jj}")
    a(f"v_mfma_f32_16x16x32_bf16 {q(Dq)}, {q(wq0)}, {q(B0)}, 0")
    a(f"v_mfma_f32_16x16x32_bf16 {q(Dh)}, {q(w10)}, {q(B0)}, 0")
    a(f"s_cmp_ge_u32 s{sW}, 4")
    a("s_cbranch_scc1 L_nomfma1")
    xbcast(x1)
    for jj in range(4):
        a(f"v_and_b32 v{B1+jj}, v{x1}, v{vM+jj}")
    a(f"v_mfma_f32_16x16x32_bf16 {q(Dq)}, {q(wq1)}, {q(B1)}, {q(Dq)}")
    a(f"v_mfma_f32_16x16x32_bf16 {q(Dh)}, {q(w11)}, {q(B1)}, {q(Dh)}")
    a("L_nomfma1:")
    for jr in range(4):
        a(f"ds_write_b32 v{T+5}, v{Dq+jr} offset:{L_PART + 32*jr}")
    setexec(0xffffffff)
    for jr in range(4):
        a(f"ds_write_b32 v{T+6}, v{Dh+jr} offset:{L_PART + 1024 + 32*jr}")
    setexec(FULL)
    a("s_waitcnt lgkmcnt(0)")
    a(f"s_mul_i32 s{sN}, s97, 0x9E3779B1")
    a(f"s_add_u32 s{sN}, s{sN}, 0x7F4A7C15")
    a(f"v_mov_b32 v{vN}, s{sN}")
    a("s_barrier")
    stamp("B1")
    a(f"s_cmp_gt_u32 s{sW}, 1")
    a("s_cbranch_scc1 L_nopub0")
    lds_sum16(F, V, vPB, L_PART, 1536)
    embed(F)
    a(f"s_cmp_eq_u32 s{sW}, 0")
    a("s_cbranch_scc1 L_pub0_full")
    setexec(0xffffffff)
    a("L_pub0_full:")
    a(f"buffer_store_dwordx4 {q(F)}, v{vYW}, {sq(sMB)}, 0 offen sc1")
    setexec(FULL)
    stamp("pub0")
    a("L_nopub0:")
    a(f"s_cmp_lt_u32 s{sW}, {nk0}")
    a("s_cbranch_scc1 L_kdone")
    a(f"s_cmp_lt_u32 s{sW}, 14")
    a("s_cbranch_scc1 L_nogate")
    acc, t0 = F + 22, F + 11
    a(f"v_mov_b32 v{acc}, 0")
    for k in range(5):
        a(f"v_lshlrev_b32 v{t0}, 16, v{gx+k}")
        a(f"v_lshlrev_b32 v{t0+1}, 16, v{gw+k}")
        a(f"v_and_b32 v{gx+k}, s{sHI}, v{gx+k}")
        a(f"v_and_b32 v{gw+k}, s{sHI}, v{gw+k}")
        a(f"v_mul_f32 v{t0}, v{t0}, v{t0+1}")
        a(f"v_mul_f32 v{t0+1}, v{gx+k}, v{gw+k}")
        a(f"v_cvt_pk_bf16_f32 v{t0}, v{t0}, v{t0+1}")
        a(f"v_lshlrev_b32 v{t0+1}, 16, v{t0}")
        a(f"v_and_b32 v{t0}, s{sHI}, v{t0}")
        a(f"v_add_f32 v{acc}, v{acc}, v{t0+1}")
        a(f"v_add_f32 v{acc}, v{acc}, v{t0}")
    wave_reduce("v_add_f32", acc)
    a(f"v_cvt_pk_bf16_f32 v{acc}, v{acc}, v{acc}")
    a(f"v_and_b32 v{acc}, s{sHI}, v{acc}")
    a(f"v_mul_f32 v{acc}, s{sL2E}, v{acc}")
    a(f"v_exp_f32 v{acc}, -v{acc}")
    a(f"v_add_f32 v{acc}, 1.0, v{acc}")
    a(f"v_rcp_f32 v{acc}, v{acc}")
    a(f"v_cvt_pk_bf16_f32 v{acc}, v{acc}, v{acc}")
    a(f"v_and_b32 v{acc}, s{sHI}, v{acc}")
    a(f"v_sub_f32 v{t0}, 1.0, v{acc}")
    a(f"v_cvt_pk_bf16_f32 v{t0}, v{t0}, v{t0}")
    a(f"v_and_b32 v{t0}, s{sHI}, v{t0}")
    a(f"s_sub_u32 s{sT1}, s{sW}, 14")
    a(f"s_lshl_b32 s{sT1}, s{sT1}, 3")
    a(f"v_mov_b32 v{acc+1}, v{t0}")
    a(f"v_mov_b32 v{t0+1}, s{sT1}")
    setexec(1 << 63)
    a(f"ds_write_b64 v{t0+1}, {q(acc,2)} offset:{L_GATE}")
    setexec(FULL)
    a("L_nogate:")
    kv_loads(K, vKo, sK)
    a("L_kdone:")
    a("s_barrier")
    if leak:
        stamp("Bk")
    a(f"s_sub_u32 s{sT0}, s{sW}, 4")
    a(f"s_cmp_ge_u32 s{sT0}, 4")
    a("s_cbranch_scc1 L_nopollq")
    a(f"buffer_load_dwordx4 {q(P0)}, v{vP0a}, {sq(sMB)}, 0 offen sc1")
    a("L_nopollq:")
    kv_loads(V, vVo, sV)
    a(f"s_cmp_ge_u32 s{sW}, 4")
    a("s_cbranch_scc1 L_nopollh")
    a(f"buffer_load_dwordx4 {q(P0)}, v{vP0a}, {sq(sMB)}, 0 offen sc1")
    a("L_nopollh:")
    stamp("viss")
    bta = [T, T + 3, T + 4, T + 5]
    a(f"v_bfe_u32 v{F+24}, v{vL}, 2, 2")
    a(f"v_lshl_add_u32 v{F+24}, v{vg}, 2, v{F+24}")
    a(f"v_lshlrev_b32 v{F+24}, 4, v{F+24}")
    a(f"v_add_u32 v{F+24}, {L_Q}, v{F+24}")
    a(f"v_and_b32 v0, 3, v{vL}")
    a(f"v_mov_b32 v{F+25}, {L_ZERO}")
    for t in range(4):
        a(f"v_cmp_eq_u32 vcc, {t}, v0")
        a(f"v_cndmask_b32 v{bta[t]}, v{F+25}, v{F+24}, vcc")
    a(f"s_cmp_lt_u32 s{sW}, 8")
    a("s_cbranch_scc1 L_lo1")
    a("s_barrier")
    a("s_waitcnt vmcnt(8)")
    a("s_branch L_qwait")

    a("L_lo1:")
    a(f"s_cmp_lt_u32 s{sW}, 4")
    a("s_cbranch_scc1 L_p0h")
    a("s_waitcnt vmcnt(8)")
    a("s_branch L_p0")
    a("L_p0h:")
    a("s_waitcnt vmcnt(0)")
    a("L_p0:")
    a(f"s_mov_b32 s{sCnt}, {spin}")
    a("L_p0l:")
    tagbits(P0, F + 24, F + 25)
    a(f"v_cmp_ne_u32 vcc, s{sN}, v{F+24}")
    a("s_cbranch_vccz L_p0ok")
    a(f"s_sub_u32 s{sCnt}, s{sCnt}, 1")
    a("s_cbranch_scc1 L_p0ok")
    a(f"buffer_load_dwordx4 {q(P0)}, v{vP0a}, {sq(sMB)}, 0 offen sc1")
    a("s_waitcnt vmcnt(0)")
    a("s_branch L_p0l")
    a("L_p0ok:")
    untag(P0)
    for m in ("quad_perm:[1,0,3,2]", "quad_perm:[2,3,0,1]", "row_half_mirror"):
        for k in range(4):
            a(f"v_add_f32_dpp v{P0+k}, v{P0+k}, v{P0+k} {m} row_mask:0xf bank_mask:0xf")
    a(f"v_lshrrev_b32 v{F+24}, 3, v{vL}")
    a(f"s_and_b32 s{sT0}, s{sW}, 3")
    a(f"v_lshl_add_u32 v{F+24}, s{sT0}, 3, v{F+24}")
    a(f"s_cmp_lt_u32 s{sW}, 4")
    a("s_cbranch_scc1 L_hpath")
    a(f"v_cvt_pk_bf16_f32 v{P0}, v{P0}, v{P0+1}")
    a(f"v_cvt_pk_bf16_f32 v{P0+1}, v{P0+2}, v{P0+3}")
    a(f"v_lshlrev_b32 v{F+25}, 3, v{F+24}")
    setexec(0x0101010101010101)
    a(f"ds_write_b64 v{F+25}, {q(P0,2)} offset:{L_Q}")
    setexec(1)
    a(f"v_mov_b32 v{F+24}, 0")
    a(f"v_mov_b32 v{F+25}, 1")
    a("s_waitcnt lgkmcnt(0)")
    a(f"ds_add_u32 v{F+24}, v{F+25} offset:{L_QFLAG}")
    setexec(FULL)
    a("s_branch L_qwait")
    a("L_hpath:")
    for k in range(4):
        a(f"v_cvt_pk_bf16_f32 v{P0+k}, v{P0+k}, v{P0+k}")
    for k in range(4):
        a(f"v_and_b32 v{P0+k}, s{sHI}, v{P0+k}")
    for k in range(4):
        a(f"v_mul_f32 v{F+26+k}, s{sL2E}, v{P0+k}")
    for k in range(4):
        a(f"v_exp_f32 v{F+26+k}, -v{F+26+k}")
    for k in range(4):
        a(f"v_add_f32 v{F+26+k}, 1.0, v{F+26+k}")
    for k in range(4):
        a(f"v_rcp_f32 v{F+26+k}, v{F+26+k}")
    for k in range(4):
        a(f"v_mul_f32 v{P0+k}, v{P0+k}, v{F+26+k}")
    for k in range(4):
        a(f"v_cvt_pk_bf16_f32 v{P0+k}, v{P0+k}, v{P0+k}")
    a(f"v_lshlrev_b32 v{F+24}, 4, v{F+24}")
    setexec(0x0101010101010101)
    a(f"ds_write_b128 v{F+24}, {q(P0)} offset:{L_HACT}")
    setexec(FULL)

    a("L_qwait:")
    lds_spin("qspin", L_QFLAG, 4, 1)
    stamp("q_ok")
    BT, D0, D1, X, P = F, F + 16, F + 20, F + 24, F + 25
    for t in range(4):
        a(f"ds_read_b128 {q(BT+4*t)}, v{bta[t]}")
    a(f"v_mov_b32 v{X}, 0xff800000")
    a("s_waitcnt lgkmcnt(0)")
    for t in range(4):
        c0 = "0" if t == 0 else q(D0)
        c1 = "0" if t == 0 else q(D1)
        a(f"v_mfma_f32_16x16x32_bf16 {q(D0)}, {q(K+4*t)}, {q(BT+4*t)}, {c0}")
        a(f"v_mfma_f32_16x16x32_bf16 {q(D1)}, {q(K+16+4*t)}, {q(BT+4*t)}, {c1}")
    a(f"s_lshl_b32 s{sT0}, s{sW}, 2")
    a(f"v_mov_b32 v{T}, s{sT0}")
    a(f"v_add_f32_dpp v{X}, v{D0+1}, v{D0} row_shl:4 row_mask:0xf bank_mask:0x1")
    a(f"v_add_f32_dpp v{X}, v{D1}, v{D1+1} row_shr:4 row_mask:0xf bank_mask:0x2")
    a(f"v_add_f32_dpp v{X}, v{D0+2}, v{X} row_shl:8 row_mask:0xf bank_mask:0x1")
    a(f"v_add_f32_dpp v{X}, v{D1+2}, v{X} row_shl:4 row_mask:0xf bank_mask:0x2")
    a(f"v_add_f32_dpp v{X}, v{D0+3}, v{X} row_shl:12 row_mask:0xf bank_mask:0x1")
    a(f"v_add_f32_dpp v{X}, v{D1+3}, v{X} row_shl:8 row_mask:0xf bank_mask:0x2")
    a(f"v_cvt_pk_bf16_f32 v{X}, v{X}, v{X}")
    a(f"v_and_b32 v{X}, s{sHI}, v{X}")
    a(f"v_mul_f32 v{X}, s{sSC}, v{X}")
    a(f"v_cvt_pk_bf16_f32 v{X}, v{X}, v{X}")
    a(f"v_and_b32 v{X}, s{sHI}, v{X}")
    a(f"v_mov_b32 v{vMx}, v{X}")
    wave_reduce("v_max_f32", vMx)
    setexec(1 << 63)
    a(f"ds_write_b32 v{T}, v{vMx} offset:{L_WMAX}")
    setexec(FULL)
    stamp("qk_ok")
    WOt, W2t = K, K + 16
    a(f"s_cmp_lt_u32 s{sW}, 8")
    a("s_cbranch_scc0 L_b3")
    a("s_waitcnt lgkmcnt(0)")
    a("s_barrier")
    a(f"buffer_load_dwordx4 {q(WOt)}, v{vWo}, {sq(sWO)}, 0 offen {flag}")
    a(f"buffer_load_dwordx4 {q(WOt+4)}, v{vWo}, {sq(sWO)}, s{sX0} offen {flag}")
    a(f"buffer_load_dwordx4 {q(WOt+8)}, v{vWo}, {sq(sWO)}, s{sX1} offen {flag}")
    a(f"buffer_load_dwordx4 {q(WOt+12)}, v{vWo}, {sq(sWO)}, s{sO3} offen {flag}")
    a(f"buffer_load_dwordx4 {q(W2t)}, v{vW2}, {sq(sW2)}, 0 offen {flag}")
    a(f"buffer_load_dwordx4 {q(W2t+4)}, v{vW2}, {sq(sW2)}, s{sX0} offen {flag}")
    stamp("wiss")
    a("L_b3:")
    a("s_waitcnt lgkmcnt(0)")
    a("s_barrier")
    stamp("B3")

    a(f"v_mov_b32 v{T}, 0")
    for k in range(4):
        a(f"ds_read_b128 {q(F+4*k)}, v{T} offset:{L_WMAX + 16*k}")
    a(f"s_mul_i32 s{sT0}, s{sW}, 528")
    a(f"v_and_b32 v{T+3}, 7, v{vL}")
    a(f"v_lshl_add_u32 v{T+3}, v{vg}, 3, v{T+3}")
    a(f"v_lshl_add_u32 v{T+3}, v{T+3}, 4, s{sT0}")
    a(f"v_mov_b32 v{T+4}, s{sT0}")
    a("s_waitcnt lgkmcnt(0)")
    a(f"v_max3_f32 v{vMx}, v{F}, v{F+1}, v{F+2}")
    for k in range(3, 15, 2):
        a(f"v_max3_f32 v{vMx}, v{vMx}, v{F+k}, v{F+k+1}")
    a(f"v_max_f32 v{vMx}, v{vMx}, v{F+15}")
    a(f"v_sub_f32 v{X}, v{X}, v{vMx}")
    a(f"v_mul_f32 v{X}, s{sL2E}, v{X}")
    a(f"v_exp_f32 v{X}, v{X}")
    a(f"v_cvt_pk_bf16_f32 v{P}, v{X}, v{X}")

    def pv(hi):
        Bp, Dpv = [F, F + 4], F + 8
        for n in range(8):
            b = Bp[n & 1]
            for jj in range(4):
                a(f"v_and_b32_dpp v{b+jj}, v{P}, v{vM+jj} row_newbcast:{n} row_mask:0xf bank_mask:0xf")
            if n < 6:
                a(f"v_add_f32_dpp v{X}, v{X}, v{X} {RED[n]}")
            if n == 6:
                setexec(1 << 63)
                a(f"ds_write_b32 v{T+4}, v{X} offset:{L_OPART + 516}")
                setexec(FULL)
            if hi:
                a(f"s_waitcnt vmcnt({7-n})")
            elif n == 0:
                a("s_waitcnt vmcnt(6)")
            c = "0" if n == 0 else q(Dpv)
            a(f"v_mfma_f32_16x16x32_bf16 {q(Dpv)}, {q(V+4*n)}, {q(b)}, {c}")
        a(f"v_mov_b32 v{T}, 0")
        a(f"v_mov_b32 v{T+4}, 1")
        setexec(0x00ff00ff00ff00ff)
        a(f"ds_write_b128 v{T+3}, {q(Dpv)} offset:{L_OPART}")
        setexec(1)
        a("s_waitcnt lgkmcnt(0)")
        a(f"ds_add_u32 v{T}, v{T+4} offset:{L_OCNT}")
        setexec(FULL)
        stamp("pvend")

    a(f"s_cmp_lt_u32 s{sW}, 8")
    a("s_cbranch_scc1 L_lowpv")
    a(f"s_lshl3_add_u32 s{sT2}, s{sH}, s{sJ}")
    a(f"s_lshl_b32 s{sT2}, s{sT2}, 10")
    a(f"s_add_u32 s{sT2}, s{sT2}, {MBA}")
    a(f"v_add_u32 v{T+6}, s{sT2}, v{vVo}")
    pv(True)
    a(f"s_cmp_eq_u32 s{sW}, 15")
    a("s_cbranch_scc0 L_done")
    if prio:
        a("s_setprio 3")
    lds_spin("ospin", L_OCNT, 16, 0)
    stamp("pv_ok")
    setexec((1 << 33) - 1)
    lds_sum16(F, V, vVo, L_OPART, 528)
    setexec(1 << 32)
    a(f"v_mov_b32 v{F}, v{vMx}")
    setexec((1 << 33) - 1)
    embed(F)
    a(f"buffer_store_dwordx4 {q(F)}, v{T+6}, {sq(sMB)}, 0 offen sc1")
    stamp("pubA")
    a("s_barrier")
    a("s_barrier")
    a("s_branch L_done")

    a("L_lowpv:")
    a(f"v_bfe_u32 v{T+7}, v{vL}, 3, 1")
    a(f"v_lshlrev_b32 v{T+7}, 6, v{T+7}")
    a(f"s_lshl_b32 s{sT1}, s{sW}, 3")
    a(f"v_add3_u32 v{T+7}, v{T+7}, s{sT1}, v{vg}")
    a(f"v_lshlrev_b32 v{T+7}, 2, v{T+7}")
    a(f"v_add_u32 v{T+7}, {L_HACT}, v{T+7}")
    a(f"ds_read2_b32 {q(vHF,2)}, v{T+7} offset0:0 offset1:4")
    pv(False)
    vML, vPA, vMSG, AO = T + 5, T + 6, T + 7, P0
    Bf = F + 24
    for t in range(2):
        for jj in range(4):
            a(f"v_and_b32 v{Bf+4*t+jj}, v{vHF+t}, v{vM+jj}")
    a(f"s_lshl3_add_u32 s{sT2}, s{sH}, s{sW}")
    a(f"s_lshl_b32 s{sT2}, s{sT2}, 10")
    a(f"s_add_u32 s{sT2}, s{sT2}, {MBA}")
    a(f"v_add_u32 v{vPA}, s{sT2}, v{vVo}")
    PAs = [V + 16 + 4 * k for k in range(depthA)]
    setexec((1 << 33) - 1)
    a(f"buffer_load_dwordx4 {q(PAs[0])}, v{vPA}, {sq(sMB)}, 0 offen sc1")
    setexec(FULL)
    a(f"s_mul_i32 s{sT0}, s{sW}, 528")
    a(f"v_add_u32 v{vMSG}, s{sT0}, v{vVo}")
    a(f"s_lshr_b32 s{sT0}, s{sW}, 1")
    a(f"s_lshl_b32 s{sT0}, s{sT0}, 7")
    a(f"s_and_b32 s{sT1}, s{sW}, 1")
    a(f"s_lshl3_add_u32 s{sT0}, s{sT1}, s{sT0}")
    a(f"v_bfe_u32 v{T+4}, v{vL}, 3, 1")
    a(f"v_mul_u32_u24 v{vML}, {4*528}, v{T+4}")
    a(f"v_lshl_add_u32 v{T}, v{vg}, 4, v{vML}")
    a(f"v_add_u32 v{T}, s{sT0}, v{T}")
    for s_ in range(4):
        a(f"v_add_u32 v{AO+s_}, {L_MSG + 528*s_}, v{T}")
    a(f"v_lshlrev_b32 v{T+4}, 3, v{T+4}")
    a(f"ds_read_b64 {q(G,2)}, v{T+4} offset:{L_GATE}")
    a(f"s_lshl_b32 s{sT0}, s{sW}, 10")
    a(f"v_add_u32 v{vYW}, s{sT0}, v{vVo}")
    a(f"s_mov_b32 s{sExB}, -1")
    a(f"s_cmp_eq_u32 s{sOdd}, 0")
    a(f"s_cselect_b32 s{sExB+1}, 0xffff, 0")
    a(f"s_and_b32 s{sT0}, s{sH}, 1")
    a(f"s_mul_i32 s{sT0}, s{sT0}, 640")
    a(f"s_mul_i32 s{sT1}, s{sJ}, 80")
    a(f"s_add_u32 s{sT0}, s{sT0}, s{sT1}")
    a(f"s_lshl4_add_u32 s{sT0}, s{sOdd}, s{sT0}")
    a(f"s_lshr_b32 s{sT1}, s{sH}, 1")
    a(f"s_lshl_b32 s{sT1}, s{sT1}, 5")
    a(f"s_add_u32 s{sT0}, s{sT0}, s{sT1}")
    a(f"v_add_lshl_u32 v{vOUT}, s{sT0}, v{vL}, 1")
    a(f"s_mul_i32 s{sT0}, s{sJ}, {6*4096}")
    a(f"s_add_u32 s{sT0}, s{sT0}, {MBB}")
    a(f"s_lshl_b32 s{sT1}, s{sH}, 12")
    a(f"s_add_u32 s{sT1}, s{sT0}, s{sT1}")
    a(f"v_add_u32 v{vPB}, s{sT1}, v{vVo}")
    a(f"s_cmp_eq_u32 s{sW}, 0")
    a("s_cbranch_scc0 L_addrok")
    a(f"s_lshl_b32 s{sT1}, s{sH}, 7")
    a(f"s_add_u32 s{sT0}, s{sT0}, s{sT1}")
    a(f"v_lshrrev_b32 v{T+3}, 3, v{vL}")
    a(f"v_lshlrev_b32 v{T+3}, 12, v{T+3}")
    a(f"v_and_b32 v{T+4}, 7, v{vL}")
    a(f"v_lshl_add_u32 v{T+3}, v{T+4}, 4, v{T+3}")
    a(f"v_add_u32 v{vPB}, s{sT0}, v{T+3}")
    a("L_addrok:")

    setexec((1 << 33) - 1)
    a(f"s_mov_b32 s{sCnt}, {spin}")
    for k in range(1, depthA):
        a(f"buffer_load_dwordx4 {q(PAs[k])}, v{vPA}, {sq(sMB)}, 0 offen sc1")
        if k + 1 < depthA:
            a(f"s_sleep {sleepA}")
    if prof and "A1st" in prof:
        a(f"s_waitcnt vmcnt({depthA-1})")
        stamp("A1st")
    a("L_pA:")
    for k in range(depthA):
        a(f"s_waitcnt vmcnt({depthA-1})")
        tagbits(PAs[k], T + 3, T + 4)
        a(f"v_cmp_ne_u32 vcc, s{sN}, v{T+3}")
        a(f"s_cbranch_vccz L_pAok{k}")
        a(f"buffer_load_dwordx4 {q(PAs[k])}, v{vPA}, {sq(sMB)}, 0 offen sc1")
    a(f"s_sub_u32 s{sCnt}, s{sCnt}, 1")
    a("s_cbranch_scc0 L_pA")
    PA = F
    for k in range(depthA):
        a(f"L_pAok{k}:")
        untag(PAs[k], 4, PA)
        if k + 1 < depthA:
            a("s_branch L_pAw")
    a("L_pAw:")
    stamp("Adet")
    a(f"ds_write_b128 v{vMSG}, {q(PA)} offset:{L_MSG}")
    setexec(FULL)
    a("s_waitcnt lgkmcnt(0)")
    a("s_barrier")
    stamp("A_ok")
    OS, ML, Dy = F, K + 24, V + 28
    for s_ in range(4):
        a(f"ds_read_b64 {q(ML+2*s_,2)}, v{vML} offset:{L_MSG + 528*s_ + 512}")
    for s_ in range(4):
        a(f"ds_read2_b64 {q(OS+4*s_)}, v{AO+s_} offset0:0 offset1:8")
    a(f"v_mfma_f32_16x16x32_bf16 {q(Dy)}, {q(W2t)}, {q(Bf)}, 0")
    a(f"v_mfma_f32_16x16x32_bf16 {q(Dy)}, {q(W2t+4)}, {q(Bf+4)}, {q(Dy)}")
    a("s_waitcnt lgkmcnt(4)")
    fs = [F + 16, F + 18, F + 20, F + 22]
    Mx, Ls, oo = F + 17, F + 24, F + 26
    a(f"v_max3_f32 v{Mx}, v{ML}, v{ML+2}, v{ML+4}")
    a(f"v_max_f32 v{Mx}, v{Mx}, v{ML+6}")
    for s_ in range(4):
        a(f"v_sub_f32 v{fs[s_]}, v{ML+2*s_}, v{Mx}")
    for s_ in range(4):
        a(f"v_mul_f32 v{fs[s_]}, s{sL2E}, v{fs[s_]}")
    for s_ in range(4):
        a(f"v_exp_f32 v{fs[s_]}, v{fs[s_]}")
    for k in range(4):
        a(f"v_mul_f32 v{Dy+k}, v{G+1}, v{Dy+k}")
    a(f"v_mul_f32 v{Ls}, v{fs[0]}, v{ML+1}")
    for s_ in range(1, 4):
        a(f"v_fmac_f32 v{Ls}, v{fs[s_]}, v{ML+2*s_+1}")
    a(f"v_rcp_f32 v{Ls}, v{Ls}")
    a("s_waitcnt lgkmcnt(0)")
    for e in (0, 2):
        a(f"v_pk_mul_f32 {q(oo+e,2)}, {q(fs[0],2)}, {q(OS+e,2)} op_sel_hi:[0,1]")
    a(f"v_mul_f32 v{Ls}, v{Ls}, v{G}")
    for s_ in range(1, 4):
        for e in (0, 2):
            a(f"v_pk_fma_f32 {q(oo+e,2)}, {q(fs[s_],2)}, {q(OS+4*s_+e,2)}, {q(oo+e,2)} op_sel_hi:[0,1,1]")
    for e in (0, 2):
        a(f"v_pk_mul_f32 {q(oo+e,2)}, {q(Ls,2)}, {q(oo+e,2)} op_sel_hi:[0,1]")
    for e in range(4):
        a(f"v_cvt_pk_bf16_f32 v{oo+e}, v{oo+e}, v{oo+e}")
    tau_of = [0, 2, 1, 3]
    for e in range(4):
        for jj in range(4):
            a(f"v_and_b32 v{V+4*e+jj}, v{oo+e}, v{vM+jj}")
        a(f"v_mfma_f32_16x16x32_bf16 {q(Dy)}, {q(WOt+4*tau_of[e])}, {q(V+4*e)}, {q(Dy)}")
    a(f"ds_write_b128 v{vYW}, {q(Dy)} offset:{L_YPART}")
    a("s_waitcnt lgkmcnt(0)")
    a("s_barrier")
    stamp("y_ok")
    a(f"s_cmp_eq_u32 s{sW}, 0")
    a("s_cbranch_scc1 L_pubB")
    a(f"s_cmp_eq_u32 s{sW}, 1")
    a("s_cbranch_scc0 L_done")
    a(f"s_lshl_b32 s{sT0}, s{sOdd}, 1")
    a(f"s_sub_u32 s{sT0}, 6, s{sT0}")
    a(f"s_cmp_lt_u32 s{sH}, s{sT0}")
    a("s_cbranch_scc0 L_done")

    a(f"s_mov_b32 s{sCnt}, {spin}")
    PBs = [K, K + 16, V][:depthB]
    tb = F
    def pollB_issue(r):
        for k in range(4):
            a(f"buffer_load_dwordx4 {q(r+4*k)}, v{vPB}, {sq(sMB)}, 0 offen offset:{1024*k} sc1")
    for d in range(depthB):
        pollB_issue(PBs[d])
        if d + 1 < depthB:
            a(f"s_sleep {sleepB}")
    a("L_pB:")
    for d in range(depthB):
        r = PBs[d]
        a(f"s_waitcnt vmcnt({4*(depthB-1)})")
        for k in range(4):
            a(f"v_perm_b32 v{tb+2*k}, v{r+4*k+1}, v{r+4*k}, s{sC}")
            a(f"v_perm_b32 v{tb+1+2*k}, v{r+4*k+3}, v{r+4*k+2}, s{sC+1}")
        for k in range(4):
            a(f"v_or_b32 v{tb+2*k}, v{tb+2*k}, v{tb+1+2*k}")
        for k in range(4):
            a(f"v_xor_b32 v{tb+2*k}, s{sN}, v{tb+2*k}")
        a(f"v_or3_b32 v{tb}, v{tb}, v{tb+2}, v{tb+4}")
        a(f"v_or_b32 v{tb}, v{tb}, v{tb+6}")
        a(f"v_cmp_ne_u32 vcc, 0, v{tb}")
        a(f"s_cbranch_vccz L_pBok{d}")
        pollB_issue(r)
    a(f"s_sub_u32 s{sCnt}, s{sCnt}, 1")
    a("s_cbranch_scc0 L_pB")
    R = F + 8
    for d in range(depthB):
        a(f"L_pBok{d}:")
        untag(PBs[d], 16, R)
        if d + 1 < depthB:
            a("s_branch L_pBw")
    a("L_pBw:")
    stamp("Bdet")
    a(f"v_pk_add_f32 {q(R,2)}, {q(R,2)}, {q(R+4,2)}")
    a(f"v_pk_add_f32 {q(R+2,2)}, {q(R+2,2)}, {q(R+6,2)}")
    a(f"v_pk_add_f32 {q(R+8,2)}, {q(R+8,2)}, {q(R+12,2)}")
    a(f"v_pk_add_f32 {q(R+10,2)}, {q(R+10,2)}, {q(R+14,2)}")
    a(f"v_pk_add_f32 {q(R,2)}, {q(R,2)}, {q(R+8,2)}")
    a(f"v_pk_add_f32 {q(R+2,2)}, {q(R+2,2)}, {q(R+10,2)}")
    for k in range(4):
        a(f"v_add_f32_dpp v{R+k}, v{R+k}, v{R+k} row_ror:8 row_mask:0xf bank_mask:0xf")
    for sw in ("v_permlane16_swap_b32", "v_permlane32_swap_b32"):
        for k in range(4):
            a(f"v_mov_b32 v{R+4+k}, v{R+k}")
        for k in range(4):
            a(f"{sw} v{R+k}, v{R+4+k}")
        for k in range(4):
            a(f"v_add_f32 v{R+k}, v{R+k}, v{R+4+k}")
    for k in range(4):
        a(f"v_cvt_pk_bf16_f32 v{R+k}, v{R+k}, v{R+k}")
    setexec(0xff)
    for k in range(4):
        a(f"buffer_store_short v{R+k}, v{vOUT}, {sq(sOUT)}, 0 offen offset:{16*k} {outflag}")
    stamp("out")
    a("s_cmp_eq_u32 s2, 0")
    a("s_cbranch_scc0 L_done")
    setexec(1)
    a(f"v_mov_b32 v{T+4}, 0")
    a(f"buffer_store_dword v{vN}, v{T+4}, {sq(sMB)}, 0 offen sc1")
    if leak:
        a("s_memrealtime s[4:5]")
        a("s_waitcnt lgkmcnt(0)")
        a("s_sub_u32 s6, s4, s98" if leakat == "end" else "s_sub_u32 s6, s100, s98")
        a("s_min_u32 s6, s6, 20000")
        a(f"s_mul_i32 s6, s6, {leak}")
        a("L_leak:")
        a("s_memrealtime s[8:9]")
        a("s_waitcnt lgkmcnt(0)")
        a("s_sub_u32 s7, s8, s4")
        a("s_cmp_lt_u32 s7, s6")
        a("s_cbranch_scc1 L_leak")
    a("s_branch L_done")

    a("L_pubB:")
    a(f"s_mov_b64 exec, s[{sExB}:{sExB+1}]")
    lds_sum16(F, V, vVo, L_YPART, 1024, halves=1)
    embed(F)
    a(f"buffer_store_dwordx4 {q(F)}, v{vPB}, {sq(sMB)}, 0 offen sc1")
    stamp("pubB")
    a("L_done:")
    if prof:
        setexec(FULL)
        a("s_waitcnt lgkmcnt(0)")
        a(f"s_lshl4_add_u32 s{sT0}, s2, s{sW}")
        a(f"s_lshl_b32 s{sT0}, s{sT0}, 7")
        a(f"s_add_u32 s26, s26, s{sT0}")
        a("s_addc_u32 s27, s27, 0")
        a("s_add_u32 s26, s26, 0x10000000")
        a("s_addc_u32 s27, s27, 0")
        for i in range(22):
            a(f"v_mov_b32 v{K+i}, s{4+i}")
        a(f"v_mov_b32 v{T}, 0")
        setexec(1)
        for k in range(6):
            a(f"global_store_dwordx4 v{T}, {q(K+4*k)}, s[26:27] offset:{16*k}")
    a("L_end:")
    a("s_endpgm")
    body = a.finish()

    head = f"""; Fused decode step: sliding-window attention (32 heads x 2048 keys, batch 2) + SiLU FFN + sigmoid gate.
; @launch grid=(256,1,1) block=(1024,1,1) lds={LDS_BYTES}
.amdgcn_target "amdgcn-amd-amdhsa--gfx950"
.text
.globl {KN}
.p2align 12
.p2align 8
.type {KN},@function
"""
    tail = f""".section .rodata,"a"
.p2align 6
.amdhsa_kernel {KN}
  .amdhsa_next_free_vgpr 128
  .amdhsa_next_free_sgpr 102
  .amdhsa_accum_offset 128
  .amdhsa_group_segment_fixed_size 0
  .amdhsa_kernarg_size 96
  .amdhsa_user_sgpr_count 2
  .amdhsa_user_sgpr_kernarg_segment_ptr 1
  .amdhsa_system_sgpr_workgroup_id_x 1
.end_amdhsa_kernel
"""
    return head + body + tail, names, a.nnops

def write(name, **kw):
    sys.path.insert(0, "bench")
    import build
    src, names, nn = gen(**kw)
    open(f"gen/{name}.s", "w").write(src)
    build.build(f"gen/{name}.s")
    return names, nn

if __name__ == "__main__":
    print(write("k8"))
    write("L_k8", leak=10)
    write("k8_t15", touch=15)
    write("L_k8_t15", leak=10, touch=15)
    write("k8_t0", touch=0)
    write("L_k8_t0", leak=10, touch=0)
```

```python
import sys
from asmlib import Asm

KN = "gated_mix__sliding_block_cached__dense_activation_silu__decode_kernel"

MB0 = 0x1000
MBA = 0x81000
MBB = 0xC1000
MBEND = 0xF1000
OOB = 0x40000000

L_PART = 0
L_OPART = 24576
L_MSG = L_OPART + 16 * 528
L_Q = L_MSG + 8 * 528
L_ZERO = L_Q + 256
L_QFLAG = L_ZERO + 16
L_OCNT = L_ZERO + 20
L_HACT = L_ZERO + 32
L_WMAX = L_HACT + 512
L_GATE = L_WMAX + 64
L_YPART = L_GATE + 16
LDS_BYTES = L_YPART + 8 * 1024

vL, vM, vKo, vVo = 1, 2, 6, 7
T = 8
vg, vr = 9, 10
K, V, P0, F = 16, 48, 80, 96
vYW, vPB, vOUT, vP0a = 84, 85, 86, 87
vHF, vMx, vN, G, vWo, vW2 = 88, 90, 91, 92, 94, 95
sK, sV, sWQ, sW1, sX, sWO, sW2, sMB, sOUT, sG = 28, 32, 36, 40, 44, 48, 52, 56, 60, 64
sTA, sTB, sKV, sMK = 68, 69, 70, 71
sO3, sOdd, sRmax = 72, 73, 74
sH, sJ, sB, sS, sW, sN = 76, 77, 78, 79, 80, 81
sExB = 78
sE = 82
sC = 86
sCnt, sT0, sT1, sT2 = 88, 89, 90, 91
sX0, sX1 = 92, 93
sL2E, sSC, sHI = 94, 95, 96
SPIN = 50000
FULL = (1 << 64) - 1

def q(r, n=4):
    return f"v[{r}:{r+n-1}]"
def sq(r, n=4):
    return f"s[{r}:{r+n-1}]"

def gen(prof=False, flag="nt", spin=SPIN, leak=0, depthA=1, depthB=1, sleepA=2, sleepB=2, outflag="", prio=True, nk0=4, leakat="end", touch=None, prio0=False, midtouch=False):
    a = Asm()
    stamp_id = [0]
    names = []
    def stamp(name):
        if leak and name == leakat:
            a("s_memrealtime s[100:101]")
        if prof and (prof is True or name in prof):
            if name in names:
                i = names.index(name)
            else:
                i = stamp_id[0]; stamp_id[0] += 1
                names.append(name)
            assert i < 11
            a(f"s_memrealtime s[{4+2*i}:{5+2*i}]")

    def srd(dst, lo, off, nrec):
        if off is None:
            a(f"s_mov_b64 s[{dst}:{dst+1}], s[{lo}:{lo+1}]")
        else:
            a(f"s_add_u32 s{dst}, s{lo}, {off}")
            a(f"s_addc_u32 s{dst+1}, s{lo+1}, 0")
        a(f"s_mov_b32 s{dst+2}, {nrec}")
        a(f"s_mov_b32 s{dst+3}, 0x20000")

    def embed(r):
        for k in range(4):
            a(f"v_perm_b32 v{r+k}, v{r+k}, v{vN}, s{sE+k}")

    def tagbits(r, t0, t1):
        a(f"v_perm_b32 v{t0}, v{r+1}, v{r}, s{sC}")
        a(f"v_perm_b32 v{t1}, v{r+3}, v{r+2}, s{sC+1}")
        a(f"v_or_b32 v{t0}, v{t0}, v{t1}")

    def untag(r, n=4, dst=None):
        for k in range(n):
            a(f"v_and_b32 v{(dst if dst is not None else r)+k}, s{sMK}, v{r+k}")

    def setexec(m):
        lo, hi = m & 0xffffffff, m >> 32
        if m == FULL:
            a("s_mov_b64 exec, -1")
        elif hi == 0 and lo <= 64:
            a(f"s_mov_b64 exec, {lo}")
        else:
            a(f"s_mov_b32 exec_lo, {hex(lo)}")
            a(f"s_mov_b32 exec_hi, {hex(hi)}")

    RED = ("quad_perm:[1,0,3,2] row_mask:0xf bank_mask:0xf", "quad_perm:[2,3,0,1] row_mask:0xf bank_mask:0xf",
           "row_half_mirror row_mask:0xf bank_mask:0xf", "row_mirror row_mask:0xf bank_mask:0xf",
           "row_bcast:15 row_mask:0xa bank_mask:0xf", "row_bcast:31 row_mask:0xc bank_mask:0xf")
    def wave_reduce(op, r):
        for m in RED:
            a(f"{op}_dpp v{r}, v{r}, v{r} {m}")

    def lds_sum16(acc, buf, vaddr, base, stride, halves=2):
        for half in range(halves):
            for k in range(8):
                a(f"ds_read_b128 {q(buf+4*k)}, v{vaddr} offset:{base + (8*half+k)*stride}")
            first = 0
            if half == 0:
                a("s_waitcnt lgkmcnt(6)")
                a(f"v_pk_add_f32 {q(acc,2)}, {q(buf,2)}, {q(buf+4,2)}")
                a(f"v_pk_add_f32 {q(acc+2,2)}, {q(buf+2,2)}, {q(buf+6,2)}")
                first = 2
            for k in range(first, 8):
                a(f"s_waitcnt lgkmcnt({7-k})")
                a(f"v_pk_add_f32 {q(acc,2)}, {q(acc,2)}, {q(buf+4*k,2)}")
                a(f"v_pk_add_f32 {q(acc+2,2)}, {q(acc+2,2)}, {q(buf+4*k+2,2)}")

    def kv_loads(base, voff, srdreg):
        for n in range(8):
            so = sTA if n < 4 else sTB
            a(f"buffer_load_dwordx4 {q(base+4*n)}, v{voff}, {sq(srdreg)}, s{so} offen offset:{1024*(n%4)} {flag}")

    def lds_spin(label, off, target, sleep):
        a(f"v_mov_b32 v{F+28}, 0")
        a(f"s_mov_b32 s{sCnt}, {spin*40}")
        a(f"L_{label}:")
        a(f"ds_read_b32 v{F+29}, v{F+28} offset:{off}")
        a("s_waitcnt lgkmcnt(0)")
        a(f"v_readfirstlane_b32 s{sT0}, v{F+29}")
        a(f"s_cmp_ge_u32 s{sT0}, {target}")
        a(f"s_cbranch_scc1 L_{label}_ok")
        if sleep:
            a(f"s_sleep {sleep}")
        a(f"s_sub_u32 s{sCnt}, s{sCnt}, 1")
        a(f"s_cbranch_scc0 L_{label}")
        a(f"L_{label}_ok:")

    a(f"{KN}:")
    a("s_cmp_ge_u32 s2, 256")
    a("s_cbranch_scc1 L_end")
    if prof or leak:
        a("s_memrealtime s[98:99]")
    a("s_load_dwordx16 s[4:19], s[0:1], 0")
    a("s_load_dwordx8 s[20:27], s[0:1], 64")
    a(f"v_lshrrev_b32 v{T}, 6, v0")
    a(f"v_and_b32 v{vL}, 63, v0")
    a(f"v_readfirstlane_b32 s{sW}, v{T}")
    a(f"s_and_b32 s{sH}, s2, 7")
    a(f"s_bfe_u32 s{sT0}, s2, 0x20003")
    a(f"s_lshl3_add_u32 s{sH}, s{sT0}, s{sH}")
    a(f"s_lshr_b32 s{sJ}, s2, 5")
    a(f"v_lshrrev_b32 v{vg}, 4, v{vL}")
    a(f"v_and_b32 v{vr}, 15, v{vL}")
    a(f"v_lshl_add_u32 v{T+3}, s{sW}, 2, v{vg}")
    a(f"v_lshlrev_b32 v{T+4}, 13, v{T+3}")
    a(f"v_lshl_add_u32 v{T+4}, v{vr}, 4, v{T+4}")
    a(f"v_add_u32 v{T+5}, {64*8192}, v{T+4}")
    a(f"v_mul_u32_u24 v{T+6}, 3456, v{T+3}")
    a(f"v_lshl_add_u32 v{T+6}, v{vr}, 4, v{T+6}")
    a(f"v_mov_b32 v{T+7}, {hex(OOB)}")
    a(f"v_cmp_gt_u32 vcc, 8, v{vr}")
    a(f"s_mul_i32 s{sT0}, s{sJ}, 80")
    a(f"s_mul_i32 s{sT1}, s{sJ}, {80*8192}")
    a(f"v_cndmask_b32 v{T+6}, v{T+7}, v{T+6}, vcc")
    a(f"v_add_u32 v{T+7}, {64*3456}, v{T+6}")
    xo = V + 18
    a(f"v_add_u32 v{xo}, s{sT0}, v{T+3}")
    a(f"v_bfe_u32 v{xo+1}, v{vL}, 3, 1")
    a(f"v_mul_u32_u24 v{xo+1}, 640, v{xo+1}")
    a(f"v_add_lshl_u32 v{xo}, v{xo}, v{xo+1}, 1")
    a(f"s_lshl_b32 s{sT2}, s{sH}, 8")
    a(f"s_add_u32 s{sT1}, s{sT1}, s{sT2}")
    a(f"s_mul_i32 s{sT2}, s{sJ}, {80*3456}")
    a(f"s_lshl_b32 s{sX0}, s{sH}, 7")
    a(f"s_add_u32 s{sT2}, s{sT2}, s{sX0}")
    a(f"s_cmp_lt_u32 s{sH}, 27")
    a(f"s_cselect_b32 s{sX0}, {79*3456+128}, 0")
    a(f"s_cselect_b32 s{sX1}, {63*1280+192}, 0")
    a(f"s_lshr_b32 s{sB}, s{sJ}, 2")
    a(f"s_lshl_b32 s{sKV}, s{sB}, 5")
    a(f"s_add_u32 s{sKV}, s{sKV}, s{sH}")
    a(f"s_lshl_b32 s{sKV}, s{sKV}, 4")
    a(f"s_and_b32 s{sS}, s{sJ}, 3")
    a(f"s_add_u32 s{sKV}, s{sKV}, s{sS}")
    a(f"s_add_u32 s{sKV}, s{sKV}, 12")
    a(f"s_lshl4_add_u32 s{sKV}, s{sKV}, s{sW}")
    a(f"s_lshl_b32 s{sKV}, s{sKV}, 13")
    a("s_waitcnt lgkmcnt(0)")
    if leak:
        stamp("kern0")
    if prof:
        a("s_memrealtime s[100:101]")
    if touch is not None:
        a(f"s_cmp_eq_u32 s{sW}, {touch}")
        a("s_cbranch_scc0 L_notouch")
        a(f"v_mov_b32 v{F}, 0")
        a(f"s_add_u32 s28, s6, s{sKV}"); a("s_addc_u32 s29, s7, 0")
        a(f"s_add_u32 s30, s8, s{sKV}"); a("s_addc_u32 s31, s9, 0")
        a(f"s_mul_i32 s34, s{sH}, {128*1280}"); a("s_add_u32 s32, s12, s34"); a("s_addc_u32 s33, s13, 0")
        a(f"s_mul_i32 s34, s{sH}, {64*1280}"); a(f"s_cmp_lt_u32 s{sH}, 27"); a("s_cselect_b32 s34, s34, 0"); a("s_add_u32 s36, s18, s34"); a("s_addc_u32 s37, s19, 0")
        setexec(1)
        a(f"global_load_dword v{F+1}, v{F}, s[28:29] nt")
        a(f"global_load_dword v{F+2}, v{F}, s[30:31] nt")
        a(f"global_load_dword v{F+3}, v{F}, s[32:33] nt")
        a(f"global_load_dword v{F+4}, v{F}, s[36:37] nt")
        a(f"global_load_dword v{F+5}, v{F}, s[26:27] offset:2048 nt")
        a(f"global_load_dword v{F+6}, v{F}, s[22:23] nt")
        setexec(FULL)
        a("L_notouch:")
    srd(sX, 4, None, 2560)
    srd(sWQ, 10, f"s{sT1}", 79*8192+256)
    srd(sW1, 16, f"s{sT2}", f"s{sX0}")
    x0, x1 = V + 16, V + 17
    wq0, w10, wq1, w11 = V, V + 4, V + 8, V + 12
    a(f"buffer_load_dwordx4 {q(wq0)}, v{T+4}, {sq(sWQ)}, 0 offen {flag}")
    a(f"buffer_load_dwordx4 {q(w10)}, v{T+6}, {sq(sW1)}, 0 offen {flag}")
    setexec(0x0101010101010101)
    a(f"buffer_load_ushort v{x0}, v{xo}, {sq(sX)}, 0 offen")
    setexec(FULL)
    a("s_load_dword s97, s[26:27], 0")
    a(f"s_cmp_ge_u32 s{sW}, 4")
    a("s_cbranch_scc1 L_notile1")
    a(f"buffer_load_dwordx4 {q(wq1)}, v{T+5}, {sq(sWQ)}, 0 offen {flag}")
    a(f"buffer_load_dwordx4 {q(w11)}, v{T+7}, {sq(sW1)}, 0 offen {flag}")
    setexec(0x0101010101010101)
    a(f"buffer_load_ushort v{x1}, v{xo}, {sq(sX)}, 0 offen offset:128")
    setexec(FULL)
    a("L_notile1:")
    gx, gw = F + 16, F + 24
    a(f"s_cmp_lt_u32 s{sW}, 14")
    a("s_cbranch_scc1 L_nogate_ld")
    srd(sG, 20, None, 1280)
    a(f"s_sub_u32 s{sT1}, s{sW}, 14")
    a(f"s_mul_i32 s{sT1}, s{sT1}, 1280")
    a(f"v_lshlrev_b32 v{F+29}, 4, v{vL}")
    a(f"v_lshlrev_b32 v{F+30}, 2, v{vL}")
    a(f"buffer_load_dwordx4 {q(gx)}, v{F+29}, {sq(sX)}, s{sT1} offen")
    a(f"buffer_load_dword v{gx+4}, v{F+30}, {sq(sX)}, s{sT1} offen offset:1024")
    a(f"buffer_load_dwordx4 {q(gw)}, v{F+29}, {sq(sG)}, 0 offen")
    a(f"buffer_load_dword v{gw+4}, v{F+30}, {sq(sG)}, 0 offen offset:1024")
    a("L_nogate_ld:")
    srd(sK, 6, f"s{sKV}", 8192)
    a(f"v_lshrrev_b32 v{T+3}, 2, v{vr}")
    a(f"v_lshlrev_b32 v{T+3}, 8, v{T+3}")
    a(f"v_lshl_add_u32 v{T+3}, v{vg}, 6, v{T+3}")
    a(f"v_and_b32 v{T+4}, 3, v{vL}")
    a(f"v_lshl_add_u32 v{vKo}, v{T+4}, 4, v{T+3}")
    a(f"v_lshlrev_b32 v{vVo}, 4, v{vL}")
    a(f"s_lshr_b32 s{sT0}, s2, 3")
    a(f"s_lshr_b32 s{sT1}, s{sW}, 1")
    a(f"s_add_u32 s{sT0}, s{sT0}, s{sT1}")
    a(f"s_and_b32 s{sT0}, s{sT0}, 1")
    a(f"s_lshl_b32 s{sTA}, s{sT0}, 12")
    a(f"s_xor_b32 s{sTB}, s{sTA}, 4096")
    a("s_barrier")
    if leak:
        stamp("B0")
    a(f"s_cmp_ge_u32 s{sW}, {nk0}")
    a("s_cbranch_scc1 L_noK0")
    kv_loads(K, vKo, sK)
    a("L_noK0:")
    srd(sV, 8, f"s{sKV}", 8192)
    srd(sMB, 26, None, MBEND)
    a(f"s_and_b32 s{sOdd}, s{sJ}, 1")
    a(f"s_mul_i32 s{sT1}, s{sJ}, 160")
    a(f"s_lshl_b32 s{sT2}, s{sOdd}, 5")
    a(f"s_add_u32 s{sT1}, s{sT1}, s{sT2}")
    a(f"s_mul_i32 s{sT0}, s{sH}, {128*1280}")
    a(f"s_add_u32 s{sT0}, s{sT0}, s{sT1}")
    srd(sWO, 12, f"s{sT0}", 127*1280+192)
    a(f"s_mul_i32 s{sT0}, s{sH}, {64*1280}")
    a(f"s_add_u32 s{sT0}, s{sT0}, s{sT1}")
    srd(sW2, 18, f"s{sT0}", f"s{sX1}")
    a(f"s_lshl_b32 s{sT2}, s{sOdd}, 2")
    a(f"s_sub_u32 s{sRmax}, 12, s{sT2}")
    srd(sOUT, 22, None, 2560)
    if prof:
        a("s_waitcnt lgkmcnt(0)")
        a("s_mov_b64 s[4:5], s[98:99]"); a("s_mov_b64 s[6:7], s[100:101]")
        stamp_id[0] = 2; names.append("start"); names.append("kern")
    for k in range(4):
        a(f"s_mov_b32 s{sE+k}, {hex(0x07060500 | k)}")
    a(f"s_mov_b32 s{sC}, 0x0c0c0400")
    a(f"s_mov_b32 s{sC+1}, 0x04000c0c")
    a(f"s_mov_b32 s{sL2E}, 0x3fb8aa3b")
    a(f"s_mov_b32 s{sSC}, 0x3db504f3")
    a(f"s_mov_b32 s{sHI}, 0xffff0000")
    a(f"s_mov_b32 s{sMK}, 0xffffff00")
    a(f"s_mov_b32 s{sX0}, {4*1280}")
    a(f"s_mov_b32 s{sX1}, {8*1280}")
    a(f"s_mov_b32 s{sO3}, {12*1280}")
    a(f"v_and_b32 v{T+3}, 1, v{vL}")
    a(f"v_lshlrev_b32 v{T+3}, 4, v{T+3}")
    a(f"v_mov_b32 v{T+4}, 0xffff")
    a(f"v_lshlrev_b32 v{T+4}, v{T+3}, v{T+4}")
    a(f"v_bfe_u32 v{T+3}, v{vL}, 1, 2")
    for jj in range(4):
        a(f"v_cmp_eq_u32 vcc, {jj}, v{T+3}")
        a(f"v_cndmask_b32 v{vM+jj}, 0, v{T+4}, vcc")
    a(f"v_mov_b32 v{T+4}, {hex(OOB)}")
    a(f"v_lshlrev_b32 v{T+3}, 4, v{vr}")
    a(f"v_cmp_gt_u32 vcc, s{sRmax}, v{vr}")
    a(f"s_mul_i32 s{sT0}, s{sW}, {16*1280}")
    a(f"s_mul_i32 s{sT1}, s{sW}, {8*1280}")
    a(f"v_cndmask_b32 v{T+3}, v{T+4}, v{T+3}, vcc")
    a(f"v_mul_u32_u24 v{T+4}, 1280, v{vg}")
    a(f"v_add_u32 v{T+3}, v{T+3}, v{T+4}")
    a(f"v_add_u32 v{vWo}, s{sT0}, v{T+3}")
    a(f"v_add_u32 v{vW2}, s{sT1}, v{T+3}")
    a(f"s_and_b32 s{sT0}, s{sW}, 3")
    a(f"s_lshl_b32 s{sT0}, s{sT0}, 7")
    a(f"s_lshl_b32 s{sT1}, s{sH}, 14")
    a(f"s_add_u32 s{sT0}, s{sT0}, s{sT1}")
    a(f"s_lshl_b32 s{sT1}, s{sB}, 9")
    a(f"s_cmp_lt_u32 s{sW}, 4")
    a(f"s_cselect_b32 s{sT1}, 1024, s{sT1}")
    a(f"s_add_u32 s{sT0}, s{sT0}, s{sT1}")
    a(f"s_add_u32 s{sT0}, s{sT0}, {MB0}")
    a(f"v_and_b32 v{T+3}, 7, v{vL}")
    a(f"v_lshlrev_b32 v{T+3}, 11, v{T+3}")
    a(f"v_lshrrev_b32 v{T+4}, 3, v{vL}")
    a(f"v_lshl_add_u32 v{T+3}, v{T+4}, 4, v{T+3}")
    a(f"v_add_u32 v{vP0a}, s{sT0}, v{T+3}")
    a(f"s_lshl3_add_u32 s{sT1}, s{sH}, s{sJ}")
    a(f"s_lshl_b32 s{sT1}, s{sT1}, 11")
    a(f"s_lshl_b32 s{sT0}, s{sW}, 10")
    a(f"s_add_u32 s{sT1}, s{sT1}, s{sT0}")
    a(f"s_add_u32 s{sT1}, s{sT1}, {MB0}")
    a(f"v_add_u32 v{vYW}, s{sT1}, v{vVo}")
    a(f"v_add_u32 v{vPB}, s{sT0}, v{vVo}")
    a(f"s_mul_i32 s{sT0}, s{sW}, 1536")
    a(f"v_and_b32 v{T+3}, 7, v{vL}")
    a(f"v_lshl_add_u32 v{T+3}, v{vg}, 5, v{T+3}")
    a(f"v_lshl_add_u32 v{T+3}, v{T+3}, 2, s{sT0}")
    a(f"v_bfe_u32 v{T+4}, v{vL}, 3, 1")
    a(f"v_lshl_add_u32 v{T+5}, v{T+4}, 9, v{T+3}")
    a(f"v_lshl_add_u32 v{T+6}, v{T+4}, 8, v{T+3}")
    a(f"s_cmp_eq_u32 s{sW}, 2")
    a("s_cbranch_scc0 L_nozero")
    a(f"v_mov_b32 v{T+3}, 0")
    a(f"v_lshlrev_b32 v{T+4}, 2, v{vL}")
    setexec(0xff)
    a(f"ds_write_b32 v{T+4}, v{T+3} offset:{L_ZERO}")
    setexec(FULL)
    a("L_nozero:")

    Dq, Dh, B0, B1 = F, F + 4, F + 8, F + 12
    a(f"s_cmp_ge_u32 s{sW}, {nk0}")
    a("s_cbranch_scc1 L_w1late")
    a("s_waitcnt vmcnt(8)")
    a("s_branch L_w1ok")
    a("L_w1late:")
    a("s_waitcnt vmcnt(0)")
    a("L_w1ok:")
    stamp("w_in")
    def xbcast(x):
        a(f"v_lshl_or_b32 v{x}, v{x}, 16, v{x}")
        a(f"v_mov_b32_dpp v{x}, v{x} row_newbcast:0 row_mask:0xf bank_mask:0x3")
        a(f"v_mov_b32_dpp v{x}, v{x} row_newbcast:8 row_mask:0xf bank_mask:0xc")
    xbcast(x0)
    for jj in range(4):
        a(f"v_and_b32 v{B0+jj}, v{x0}, v{vM+jj}")
    a(f"v_mfma_f32_16x16x32_bf16 {q(Dq)}, {q(wq0)}, {q(B0)}, 0")
    a(f"v_mfma_f32_16x16x32_bf16 {q(Dh)}, {q(w10)}, {q(B0)}, 0")
    a(f"s_cmp_ge_u32 s{sW}, 4")
    a("s_cbranch_scc1 L_nomfma1")
    xbcast(x1)
    for jj in range(4):
        a(f"v_and_b32 v{B1+jj}, v{x1}, v{vM+jj}")
    a(f"v_mfma_f32_16x16x32_bf16 {q(Dq)}, {q(wq1)}, {q(B1)}, {q(Dq)}")
    a(f"v_mfma_f32_16x16x32_bf16 {q(Dh)}, {q(w11)}, {q(B1)}, {q(Dh)}")
    a("L_nomfma1:")
    for jr in range(4):
        a(f"ds_write_b32 v{T+5}, v{Dq+jr} offset:{L_PART + 32*jr}")
    setexec(0xffffffff)
    for jr in range(4):
        a(f"ds_write_b32 v{T+6}, v{Dh+jr} offset:{L_PART + 1024 + 32*jr}")
    setexec(FULL)
    a("s_waitcnt lgkmcnt(0)")
    a(f"s_mul_i32 s{sN}, s97, 0x9E3779B1")
    a(f"s_add_u32 s{sN}, s{sN}, 0x7F4A7C15")
    a(f"v_mov_b32 v{vN}, s{sN}")
    a("s_barrier")
    stamp("B1")
    a(f"s_cmp_gt_u32 s{sW}, 1")
    a("s_cbranch_scc1 L_nopub0")
    if prio0:
        a("s_setprio 3")
    lds_sum16(F, V, vPB, L_PART, 1536)
    embed(F)
    a(f"s_cmp_eq_u32 s{sW}, 0")
    a("s_cbranch_scc1 L_pub0_full")
    setexec(0xffffffff)
    a("L_pub0_full:")
    a(f"buffer_store_dwordx4 {q(F)}, v{vYW}, {sq(sMB)}, 0 offen sc1")
    setexec(FULL)
    if prio0:
        a("s_setprio 0")
    stamp("pub0")
    a("L_nopub0:")
    a(f"s_cmp_lt_u32 s{sW}, {nk0}")
    a("s_cbranch_scc1 L_kdone")
    a(f"s_cmp_lt_u32 s{sW}, 14")
    a("s_cbranch_scc1 L_nogate")
    acc, t0 = F + 22, F + 11
    a(f"v_mov_b32 v{acc}, 0")
    for k in range(5):
        a(f"v_lshlrev_b32 v{t0}, 16, v{gx+k}")
        a(f"v_lshlrev_b32 v{t0+1}, 16, v{gw+k}")
        a(f"v_and_b32 v{gx+k}, s{sHI}, v{gx+k}")
        a(f"v_and_b32 v{gw+k}, s{sHI}, v{gw+k}")
        a(f"v_mul_f32 v{t0}, v{t0}, v{t0+1}")
        a(f"v_mul_f32 v{t0+1}, v{gx+k}, v{gw+k}")
        a(f"v_cvt_pk_bf16_f32 v{t0}, v{t0}, v{t0+1}")
        a(f"v_lshlrev_b32 v{t0+1}, 16, v{t0}")
        a(f"v_and_b32 v{t0}, s{sHI}, v{t0}")
        a(f"v_add_f32 v{acc}, v{acc}, v{t0+1}")
        a(f"v_add_f32 v{acc}, v{acc}, v{t0}")
    wave_reduce("v_add_f32", acc)
    a(f"v_cvt_pk_bf16_f32 v{acc}, v{acc}, v{acc}")
    a(f"v_and_b32 v{acc}, s{sHI}, v{acc}")
    a(f"v_mul_f32 v{acc}, s{sL2E}, v{acc}")
    a(f"v_exp_f32 v{acc}, -v{acc}")
    a(f"v_add_f32 v{acc}, 1.0, v{acc}")
    a(f"v_rcp_f32 v{acc}, v{acc}")
    a(f"v_cvt_pk_bf16_f32 v{acc}, v{acc}, v{acc}")
    a(f"v_and_b32 v{acc}, s{sHI}, v{acc}")
    a(f"v_sub_f32 v{t0}, 1.0, v{acc}")
    a(f"v_cvt_pk_bf16_f32 v{t0}, v{t0}, v{t0}")
    a(f"v_and_b32 v{t0}, s{sHI}, v{t0}")
    a(f"s_sub_u32 s{sT1}, s{sW}, 14")
    a(f"s_lshl_b32 s{sT1}, s{sT1}, 3")
    a(f"v_mov_b32 v{acc+1}, v{t0}")
    a(f"v_mov_b32 v{t0+1}, s{sT1}")
    setexec(1 << 63)
    a(f"ds_write_b64 v{t0+1}, {q(acc,2)} offset:{L_GATE}")
    setexec(FULL)
    a("L_nogate:")
    kv_loads(K, vKo, sK)
    a("L_kdone:")
    a("s_barrier")
    if leak:
        stamp("Bk")
    a(f"s_sub_u32 s{sT0}, s{sW}, 4")
    a(f"s_cmp_ge_u32 s{sT0}, 4")
    a("s_cbranch_scc1 L_nopollq")
    a(f"buffer_load_dwordx4 {q(P0)}, v{vP0a}, {sq(sMB)}, 0 offen sc1")
    a("L_nopollq:")
    kv_loads(V, vVo, sV)
    a(f"s_cmp_ge_u32 s{sW}, 4")
    a("s_cbranch_scc1 L_nopollh")
    a(f"buffer_load_dwordx4 {q(P0)}, v{vP0a}, {sq(sMB)}, 0 offen sc1")
    a("L_nopollh:")
    if midtouch:
        a(f"s_cmp_eq_u32 s{sW}, 2")
        a("s_cbranch_scc0 L_nomid")
        a(f"v_mov_b32 v{F}, 0")
        setexec(1)
        a(f"buffer_load_dword v{F+1}, v{F}, {sq(sWO)}, 0 offen nt")
        a(f"buffer_load_dword v{F+2}, v{F}, {sq(sW2)}, 0 offen nt")
        a(f"buffer_load_dword v{F+3}, v{F}, {sq(sOUT)}, 0 offen nt")
        setexec(FULL)
        a("L_nomid:")
    stamp("viss")
    bta = [T, T + 3, T + 4, T + 5]
    a(f"v_bfe_u32 v{F+24}, v{vL}, 2, 2")
    a(f"v_lshl_add_u32 v{F+24}, v{vg}, 2, v{F+24}")
    a(f"v_lshlrev_b32 v{F+24}, 4, v{F+24}")
    a(f"v_add_u32 v{F+24}, {L_Q}, v{F+24}")
    a(f"v_and_b32 v0, 3, v{vL}")
    a(f"v_mov_b32 v{F+25}, {L_ZERO}")
    for t in range(4):
        a(f"v_cmp_eq_u32 vcc, {t}, v0")
        a(f"v_cndmask_b32 v{bta[t]}, v{F+25}, v{F+24}, vcc")
    a(f"s_cmp_lt_u32 s{sW}, 8")
    a("s_cbranch_scc1 L_lo1")
    a("s_barrier")
    a("s_waitcnt vmcnt(8)")
    a("s_branch L_qwait")

    a("L_lo1:")
    a(f"s_cmp_lt_u32 s{sW}, 4")
    a("s_cbranch_scc1 L_p0h")
    a("s_waitcnt vmcnt(8)")
    a("s_branch L_p0")
    a("L_p0h:")
    a("s_waitcnt vmcnt(0)")
    a("L_p0:")
    a(f"s_mov_b32 s{sCnt}, {spin}")
    a("L_p0l:")
    tagbits(P0, F + 24, F + 25)
    a(f"v_cmp_ne_u32 vcc, s{sN}, v{F+24}")
    a("s_cbranch_vccz L_p0ok")
    a(f"s_sub_u32 s{sCnt}, s{sCnt}, 1")
    a("s_cbranch_scc1 L_p0ok")
    a(f"buffer_load_dwordx4 {q(P0)}, v{vP0a}, {sq(sMB)}, 0 offen sc1")
    a("s_waitcnt vmcnt(0)")
    a("s_branch L_p0l")
    a("L_p0ok:")
    if prof and "p0cnt" in prof:
        i = stamp_id[0]; stamp_id[0] += 1; names.append("p0cnt")
        a(f"s_sub_u32 s{4+2*i}, {spin}, s{sCnt}")
        a(f"s_add_u32 s{4+2*i}, s{4+2*i}, 1")
        a(f"s_mov_b32 s{5+2*i}, 0")
    untag(P0)
    for m in ("quad_perm:[1,0,3,2]", "quad_perm:[2,3,0,1]", "row_half_mirror"):
        for k in range(4):
            a(f"v_add_f32_dpp v{P0+k}, v{P0+k}, v{P0+k} {m} row_mask:0xf bank_mask:0xf")
    a(f"v_lshrrev_b32 v{F+24}, 3, v{vL}")
    a(f"s_and_b32 s{sT0}, s{sW}, 3")
    a(f"v_lshl_add_u32 v{F+24}, s{sT0}, 3, v{F+24}")
    a(f"s_cmp_lt_u32 s{sW}, 4")
    a("s_cbranch_scc1 L_hpath")
    a(f"v_cvt_pk_bf16_f32 v{P0}, v{P0}, v{P0+1}")
    a(f"v_cvt_pk_bf16_f32 v{P0+1}, v{P0+2}, v{P0+3}")
    a(f"v_lshlrev_b32 v{F+25}, 3, v{F+24}")
    setexec(0x0101010101010101)
    a(f"ds_write_b64 v{F+25}, {q(P0,2)} offset:{L_Q}")
    setexec(1)
    a(f"v_mov_b32 v{F+24}, 0")
    a(f"v_mov_b32 v{F+25}, 1")
    a("s_waitcnt lgkmcnt(0)")
    a(f"ds_add_u32 v{F+24}, v{F+25} offset:{L_QFLAG}")
    setexec(FULL)
    a("s_branch L_qwait")
    a("L_hpath:")
    for k in range(4):
        a(f"v_cvt_pk_bf16_f32 v{P0+k}, v{P0+k}, v{P0+k}")
    for k in range(4):
        a(f"v_and_b32 v{P0+k}, s{sHI}, v{P0+k}")
    for k in range(4):
        a(f"v_mul_f32 v{F+26+k}, s{sL2E}, v{P0+k}")
    for k in range(4):
        a(f"v_exp_f32 v{F+26+k}, -v{F+26+k}")
    for k in range(4):
        a(f"v_add_f32 v{F+26+k}, 1.0, v{F+26+k}")
    for k in range(4):
        a(f"v_rcp_f32 v{F+26+k}, v{F+26+k}")
    for k in range(4):
        a(f"v_mul_f32 v{P0+k}, v{P0+k}, v{F+26+k}")
    for k in range(4):
        a(f"v_cvt_pk_bf16_f32 v{P0+k}, v{P0+k}, v{P0+k}")
    a(f"v_lshlrev_b32 v{F+24}, 4, v{F+24}")
    setexec(0x0101010101010101)
    a(f"ds_write_b128 v{F+24}, {q(P0)} offset:{L_HACT}")
    setexec(FULL)

    a("L_qwait:")
    lds_spin("qspin", L_QFLAG, 4, 1)
    stamp("q_ok")
    BT, D0, D1, X, P = F, F + 16, F + 20, F + 24, F + 25
    for t in range(4):
        a(f"ds_read_b128 {q(BT+4*t)}, v{bta[t]}")
    a(f"v_mov_b32 v{X}, 0xff800000")
    a("s_waitcnt lgkmcnt(0)")
    for t in range(4):
        c0 = "0" if t == 0 else q(D0)
        c1 = "0" if t == 0 else q(D1)
        a(f"v_mfma_f32_16x16x32_bf16 {q(D0)}, {q(K+4*t)}, {q(BT+4*t)}, {c0}")
        a(f"v_mfma_f32_16x16x32_bf16 {q(D1)}, {q(K+16+4*t)}, {q(BT+4*t)}, {c1}")
    a(f"s_lshl_b32 s{sT0}, s{sW}, 2")
    a(f"v_mov_b32 v{T}, s{sT0}")
    a(f"v_add_f32_dpp v{X}, v{D0+1}, v{D0} row_shl:4 row_mask:0xf bank_mask:0x1")
    a(f"v_add_f32_dpp v{X}, v{D1}, v{D1+1} row_shr:4 row_mask:0xf bank_mask:0x2")
    a(f"v_add_f32_dpp v{X}, v{D0+2}, v{X} row_shl:8 row_mask:0xf bank_mask:0x1")
    a(f"v_add_f32_dpp v{X}, v{D1+2}, v{X} row_shl:4 row_mask:0xf bank_mask:0x2")
    a(f"v_add_f32_dpp v{X}, v{D0+3}, v{X} row_shl:12 row_mask:0xf bank_mask:0x1")
    a(f"v_add_f32_dpp v{X}, v{D1+3}, v{X} row_shl:8 row_mask:0xf bank_mask:0x2")
    a(f"v_cvt_pk_bf16_f32 v{X}, v{X}, v{X}")
    a(f"v_and_b32 v{X}, s{sHI}, v{X}")
    a(f"v_mul_f32 v{X}, s{sSC}, v{X}")
    a(f"v_cvt_pk_bf16_f32 v{X}, v{X}, v{X}")
    a(f"v_and_b32 v{X}, s{sHI}, v{X}")
    a(f"v_mov_b32 v{vMx}, v{X}")
    wave_reduce("v_max_f32", vMx)
    setexec(1 << 63)
    a(f"ds_write_b32 v{T}, v{vMx} offset:{L_WMAX}")
    setexec(FULL)
    stamp("qk_ok")
    WOt, W2t = K, K + 16
    a(f"s_cmp_lt_u32 s{sW}, 8")
    a("s_cbranch_scc0 L_b3")
    a("s_waitcnt lgkmcnt(0)")
    a("s_barrier")
    a(f"buffer_load_dwordx4 {q(WOt)}, v{vWo}, {sq(sWO)}, 0 offen {flag}")
    a(f"buffer_load_dwordx4 {q(WOt+4)}, v{vWo}, {sq(sWO)}, s{sX0} offen {flag}")
    a(f"buffer_load_dwordx4 {q(WOt+8)}, v{vWo}, {sq(sWO)}, s{sX1} offen {flag}")
    a(f"buffer_load_dwordx4 {q(WOt+12)}, v{vWo}, {sq(sWO)}, s{sO3} offen {flag}")
    a(f"buffer_load_dwordx4 {q(W2t)}, v{vW2}, {sq(sW2)}, 0 offen {flag}")
    a(f"buffer_load_dwordx4 {q(W2t+4)}, v{vW2}, {sq(sW2)}, s{sX0} offen {flag}")
    stamp("wiss")
    a("L_b3:")
    a("s_waitcnt lgkmcnt(0)")
    a("s_barrier")
    stamp("B3")

    a(f"v_mov_b32 v{T}, 0")
    for k in range(4):
        a(f"ds_read_b128 {q(F+4*k)}, v{T} offset:{L_WMAX + 16*k}")
    a(f"s_mul_i32 s{sT0}, s{sW}, 528")
    a(f"v_and_b32 v{T+3}, 7, v{vL}")
    a(f"v_lshl_add_u32 v{T+3}, v{vg}, 3, v{T+3}")
    a(f"v_lshl_add_u32 v{T+3}, v{T+3}, 4, s{sT0}")
    a(f"v_mov_b32 v{T+4}, s{sT0}")
    a("s_waitcnt lgkmcnt(0)")
    a(f"v_max3_f32 v{vMx}, v{F}, v{F+1}, v{F+2}")
    for k in range(3, 15, 2):
        a(f"v_max3_f32 v{vMx}, v{vMx}, v{F+k}, v{F+k+1}")
    a(f"v_max_f32 v{vMx}, v{vMx}, v{F+15}")
    a(f"v_sub_f32 v{X}, v{X}, v{vMx}")
    a(f"v_mul_f32 v{X}, s{sL2E}, v{X}")
    a(f"v_exp_f32 v{X}, v{X}")
    a(f"v_cvt_pk_bf16_f32 v{P}, v{X}, v{X}")

    def pv(hi):
        Bp, Dpv = [F, F + 4], F + 8
        for n in range(8):
            b = Bp[n & 1]
            for jj in range(4):
                a(f"v_and_b32_dpp v{b+jj}, v{P}, v{vM+jj} row_newbcast:{n} row_mask:0xf bank_mask:0xf")
            if n < 6:
                a(f"v_add_f32_dpp v{X}, v{X}, v{X} {RED[n]}")
            if n == 6:
                setexec(1 << 63)
                a(f"ds_write_b32 v{T+4}, v{X} offset:{L_OPART + 516}")
                setexec(FULL)
            if hi:
                a(f"s_waitcnt vmcnt({7-n})")
            elif n == 0:
                a("s_waitcnt vmcnt(6)")
            c = "0" if n == 0 else q(Dpv)
            a(f"v_mfma_f32_16x16x32_bf16 {q(Dpv)}, {q(V+4*n)}, {q(b)}, {c}")
        a(f"v_mov_b32 v{T}, 0")
        a(f"v_mov_b32 v{T+4}, 1")
        setexec(0x00ff00ff00ff00ff)
        a(f"ds_write_b128 v{T+3}, {q(Dpv)} offset:{L_OPART}")
        setexec(1)
        a("s_waitcnt lgkmcnt(0)")
        a(f"ds_add_u32 v{T}, v{T+4} offset:{L_OCNT}")
        setexec(FULL)
        stamp("pvend")

    a(f"s_cmp_lt_u32 s{sW}, 8")
    a("s_cbranch_scc1 L_lowpv")
    a(f"s_lshl3_add_u32 s{sT2}, s{sH}, s{sJ}")
    a(f"s_lshl_b32 s{sT2}, s{sT2}, 10")
    a(f"s_add_u32 s{sT2}, s{sT2}, {MBA}")
    a(f"v_add_u32 v{T+6}, s{sT2}, v{vVo}")
    pv(True)
    a(f"s_cmp_eq_u32 s{sW}, 15")
    a("s_cbranch_scc0 L_done")
    if prio:
        a("s_setprio 3")
    lds_spin("ospin", L_OCNT, 16, 0)
    stamp("pv_ok")
    setexec((1 << 33) - 1)
    lds_sum16(F, V, vVo, L_OPART, 528)
    setexec(1 << 32)
    a(f"v_mov_b32 v{F}, v{vMx}")
    setexec((1 << 33) - 1)
    embed(F)
    a(f"buffer_store_dwordx4 {q(F)}, v{T+6}, {sq(sMB)}, 0 offen sc1")
    stamp("pubA")
    a("s_barrier")
    a("s_barrier")
    a("s_branch L_done")

    a("L_lowpv:")
    a(f"v_bfe_u32 v{T+7}, v{vL}, 3, 1")
    a(f"v_lshlrev_b32 v{T+7}, 6, v{T+7}")
    a(f"s_lshl_b32 s{sT1}, s{sW}, 3")
    a(f"v_add3_u32 v{T+7}, v{T+7}, s{sT1}, v{vg}")
    a(f"v_lshlrev_b32 v{T+7}, 2, v{T+7}")
    a(f"v_add_u32 v{T+7}, {L_HACT}, v{T+7}")
    a(f"ds_read2_b32 {q(vHF,2)}, v{T+7} offset0:0 offset1:4")
    pv(False)
    vML, vPA, vMSG, AO = T + 5, T + 6, T + 7, P0
    Bf = F + 24
    for t in range(2):
        for jj in range(4):
            a(f"v_and_b32 v{Bf+4*t+jj}, v{vHF+t}, v{vM+jj}")
    a(f"s_lshl3_add_u32 s{sT2}, s{sH}, s{sW}")
    a(f"s_lshl_b32 s{sT2}, s{sT2}, 10")
    a(f"s_add_u32 s{sT2}, s{sT2}, {MBA}")
    a(f"v_add_u32 v{vPA}, s{sT2}, v{vVo}")
    PAs = [V + 16 + 4 * k for k in range(depthA)]
    setexec((1 << 33) - 1)
    a(f"buffer_load_dwordx4 {q(PAs[0])}, v{vPA}, {sq(sMB)}, 0 offen sc1")
    setexec(FULL)
    a(f"s_mul_i32 s{sT0}, s{sW}, 528")
    a(f"v_add_u32 v{vMSG}, s{sT0}, v{vVo}")
    a(f"s_lshr_b32 s{sT0}, s{sW}, 1")
    a(f"s_lshl_b32 s{sT0}, s{sT0}, 7")
    a(f"s_and_b32 s{sT1}, s{sW}, 1")
    a(f"s_lshl3_add_u32 s{sT0}, s{sT1}, s{sT0}")
    a(f"v_bfe_u32 v{T+4}, v{vL}, 3, 1")
    a(f"v_mul_u32_u24 v{vML}, {4*528}, v{T+4}")
    a(f"v_lshl_add_u32 v{T}, v{vg}, 4, v{vML}")
    a(f"v_add_u32 v{T}, s{sT0}, v{T}")
    for s_ in range(4):
        a(f"v_add_u32 v{AO+s_}, {L_MSG + 528*s_}, v{T}")
    a(f"v_lshlrev_b32 v{T+4}, 3, v{T+4}")
    a(f"ds_read_b64 {q(G,2)}, v{T+4} offset:{L_GATE}")
    a(f"s_lshl_b32 s{sT0}, s{sW}, 10")
    a(f"v_add_u32 v{vYW}, s{sT0}, v{vVo}")
    a(f"s_mov_b32 s{sExB}, -1")
    a(f"s_cmp_eq_u32 s{sOdd}, 0")
    a(f"s_cselect_b32 s{sExB+1}, 0xffff, 0")
    a(f"s_and_b32 s{sT0}, s{sH}, 1")
    a(f"s_mul_i32 s{sT0}, s{sT0}, 640")
    a(f"s_mul_i32 s{sT1}, s{sJ}, 80")
    a(f"s_add_u32 s{sT0}, s{sT0}, s{sT1}")
    a(f"s_lshl4_add_u32 s{sT0}, s{sOdd}, s{sT0}")
    a(f"s_lshr_b32 s{sT1}, s{sH}, 1")
    a(f"s_lshl_b32 s{sT1}, s{sT1}, 5")
    a(f"s_add_u32 s{sT0}, s{sT0}, s{sT1}")
    a(f"v_add_lshl_u32 v{vOUT}, s{sT0}, v{vL}, 1")
    a(f"s_mul_i32 s{sT0}, s{sJ}, {6*4096}")
    a(f"s_add_u32 s{sT0}, s{sT0}, {MBB}")
    a(f"s_lshl_b32 s{sT1}, s{sH}, 12")
    a(f"s_add_u32 s{sT1}, s{sT0}, s{sT1}")
    a(f"v_add_u32 v{vPB}, s{sT1}, v{vVo}")
    a(f"s_cmp_eq_u32 s{sW}, 0")
    a("s_cbranch_scc0 L_addrok")
    a(f"s_lshl_b32 s{sT1}, s{sH}, 7")
    a(f"s_add_u32 s{sT0}, s{sT0}, s{sT1}")
    a(f"v_lshrrev_b32 v{T+3}, 3, v{vL}")
    a(f"v_lshlrev_b32 v{T+3}, 12, v{T+3}")
    a(f"v_and_b32 v{T+4}, 7, v{vL}")
    a(f"v_lshl_add_u32 v{T+3}, v{T+4}, 4, v{T+3}")
    a(f"v_add_u32 v{vPB}, s{sT0}, v{T+3}")
    a("L_addrok:")

    setexec((1 << 33) - 1)
    a(f"s_mov_b32 s{sCnt}, {spin}")
    for k in range(1, depthA):
        a(f"buffer_load_dwordx4 {q(PAs[k])}, v{vPA}, {sq(sMB)}, 0 offen sc1")
        if k + 1 < depthA:
            a(f"s_sleep {sleepA}")
    if prof and "A1st" in prof:
        a(f"s_waitcnt vmcnt({depthA-1})")
        stamp("A1st")
    a("L_pA:")
    for k in range(depthA):
        a(f"s_waitcnt vmcnt({depthA-1})")
        tagbits(PAs[k], T + 3, T + 4)
        a(f"v_cmp_ne_u32 vcc, s{sN}, v{T+3}")
        a(f"s_cbranch_vccz L_pAok{k}")
        a(f"buffer_load_dwordx4 {q(PAs[k])}, v{vPA}, {sq(sMB)}, 0 offen sc1")
    a(f"s_sub_u32 s{sCnt}, s{sCnt}, 1")
    a("s_cbranch_scc0 L_pA")
    PA = F
    for k in range(depthA):
        a(f"L_pAok{k}:")
        untag(PAs[k], 4, PA)
        if k + 1 < depthA:
            a("s_branch L_pAw")
    a("L_pAw:")
    stamp("Adet")
    a(f"ds_write_b128 v{vMSG}, {q(PA)} offset:{L_MSG}")
    setexec(FULL)
    a("s_waitcnt lgkmcnt(0)")
    a("s_barrier")
    stamp("A_ok")
    OS, ML, Dy = F, K + 24, V + 28
    for s_ in range(4):
        a(f"ds_read_b64 {q(ML+2*s_,2)}, v{vML} offset:{L_MSG + 528*s_ + 512}")
    for s_ in range(4):
        a(f"ds_read2_b64 {q(OS+4*s_)}, v{AO+s_} offset0:0 offset1:8")
    a(f"v_mfma_f32_16x16x32_bf16 {q(Dy)}, {q(W2t)}, {q(Bf)}, 0")
    a(f"v_mfma_f32_16x16x32_bf16 {q(Dy)}, {q(W2t+4)}, {q(Bf+4)}, {q(Dy)}")
    a("s_waitcnt lgkmcnt(4)")
    fs = [F + 16, F + 18, F + 20, F + 22]
    Mx, Ls, oo = F + 17, F + 24, F + 26
    a(f"v_max3_f32 v{Mx}, v{ML}, v{ML+2}, v{ML+4}")
    a(f"v_max_f32 v{Mx}, v{Mx}, v{ML+6}")
    for s_ in range(4):
        a(f"v_sub_f32 v{fs[s_]}, v{ML+2*s_}, v{Mx}")
    for s_ in range(4):
        a(f"v_mul_f32 v{fs[s_]}, s{sL2E}, v{fs[s_]}")
    for s_ in range(4):
        a(f"v_exp_f32 v{fs[s_]}, v{fs[s_]}")
    for k in range(4):
        a(f"v_mul_f32 v{Dy+k}, v{G+1}, v{Dy+k}")
    a(f"v_mul_f32 v{Ls}, v{fs[0]}, v{ML+1}")
    for s_ in range(1, 4):
        a(f"v_fmac_f32 v{Ls}, v{fs[s_]}, v{ML+2*s_+1}")
    a(f"v_rcp_f32 v{Ls}, v{Ls}")
    a("s_waitcnt lgkmcnt(0)")
    for e in (0, 2):
        a(f"v_pk_mul_f32 {q(oo+e,2)}, {q(fs[0],2)}, {q(OS+e,2)} op_sel_hi:[0,1]")
    a(f"v_mul_f32 v{Ls}, v{Ls}, v{G}")
    for s_ in range(1, 4):
        for e in (0, 2):
            a(f"v_pk_fma_f32 {q(oo+e,2)}, {q(fs[s_],2)}, {q(OS+4*s_+e,2)}, {q(oo+e,2)} op_sel_hi:[0,1,1]")
    for e in (0, 2):
        a(f"v_pk_mul_f32 {q(oo+e,2)}, {q(Ls,2)}, {q(oo+e,2)} op_sel_hi:[0,1]")
    for e in range(4):
        a(f"v_cvt_pk_bf16_f32 v{oo+e}, v{oo+e}, v{oo+e}")
    tau_of = [0, 2, 1, 3]
    for e in range(4):
        for jj in range(4):
            a(f"v_and_b32 v{V+4*e+jj}, v{oo+e}, v{vM+jj}")
        a(f"v_mfma_f32_16x16x32_bf16 {q(Dy)}, {q(WOt+4*tau_of[e])}, {q(V+4*e)}, {q(Dy)}")
    a(f"ds_write_b128 v{vYW}, {q(Dy)} offset:{L_YPART}")
    a("s_waitcnt lgkmcnt(0)")
    a("s_barrier")
    stamp("y_ok")
    a(f"s_cmp_eq_u32 s{sW}, 0")
    a("s_cbranch_scc1 L_pubB")
    a(f"s_cmp_eq_u32 s{sW}, 1")
    a("s_cbranch_scc0 L_done")
    a(f"s_lshl_b32 s{sT0}, s{sOdd}, 1")
    a(f"s_sub_u32 s{sT0}, 6, s{sT0}")
    a(f"s_cmp_lt_u32 s{sH}, s{sT0}")
    a("s_cbranch_scc0 L_done")

    a(f"s_mov_b32 s{sCnt}, {spin}")
    PBs = [K, K + 16, V][:depthB]
    tb = F
    def pollB_issue(r):
        for k in range(4):
            a(f"buffer_load_dwordx4 {q(r+4*k)}, v{vPB}, {sq(sMB)}, 0 offen offset:{1024*k} sc1")
    for d in range(depthB):
        pollB_issue(PBs[d])
        if d + 1 < depthB:
            a(f"s_sleep {sleepB}")
    a("L_pB:")
    for d in range(depthB):
        r = PBs[d]
        a(f"s_waitcnt vmcnt({4*(depthB-1)})")
        for k in range(4):
            a(f"v_perm_b32 v{tb+2*k}, v{r+4*k+1}, v{r+4*k}, s{sC}")
            a(f"v_perm_b32 v{tb+1+2*k}, v{r+4*k+3}, v{r+4*k+2}, s{sC+1}")
        for k in range(4):
            a(f"v_or_b32 v{tb+2*k}, v{tb+2*k}, v{tb+1+2*k}")
        for k in range(4):
            a(f"v_xor_b32 v{tb+2*k}, s{sN}, v{tb+2*k}")
        a(f"v_or3_b32 v{tb}, v{tb}, v{tb+2}, v{tb+4}")
        a(f"v_or_b32 v{tb}, v{tb}, v{tb+6}")
        a(f"v_cmp_ne_u32 vcc, 0, v{tb}")
        a(f"s_cbranch_vccz L_pBok{d}")
        pollB_issue(r)
    a(f"s_sub_u32 s{sCnt}, s{sCnt}, 1")
    a("s_cbranch_scc0 L_pB")
    R = F + 8
    for d in range(depthB):
        a(f"L_pBok{d}:")
        untag(PBs[d], 16, R)
        if d + 1 < depthB:
            a("s_branch L_pBw")
    a("L_pBw:")
    stamp("Bdet")
    a(f"v_pk_add_f32 {q(R,2)}, {q(R,2)}, {q(R+4,2)}")
    a(f"v_pk_add_f32 {q(R+2,2)}, {q(R+2,2)}, {q(R+6,2)}")
    a(f"v_pk_add_f32 {q(R+8,2)}, {q(R+8,2)}, {q(R+12,2)}")
    a(f"v_pk_add_f32 {q(R+10,2)}, {q(R+10,2)}, {q(R+14,2)}")
    a(f"v_pk_add_f32 {q(R,2)}, {q(R,2)}, {q(R+8,2)}")
    a(f"v_pk_add_f32 {q(R+2,2)}, {q(R+2,2)}, {q(R+10,2)}")
    for k in range(4):
        a(f"v_add_f32_dpp v{R+k}, v{R+k}, v{R+k} row_ror:8 row_mask:0xf bank_mask:0xf")
    for sw in ("v_permlane16_swap_b32", "v_permlane32_swap_b32"):
        for k in range(4):
            a(f"v_mov_b32 v{R+4+k}, v{R+k}")
        for k in range(4):
            a(f"{sw} v{R+k}, v{R+4+k}")
        for k in range(4):
            a(f"v_add_f32 v{R+k}, v{R+k}, v{R+4+k}")
    for k in range(4):
        a(f"v_cvt_pk_bf16_f32 v{R+k}, v{R+k}, v{R+k}")
    setexec(0xff)
    for k in range(4):
        a(f"buffer_store_short v{R+k}, v{vOUT}, {sq(sOUT)}, 0 offen offset:{16*k} {outflag}")
    stamp("out")
    a("s_cmp_eq_u32 s2, 0")
    a("s_cbranch_scc0 L_done")
    setexec(1)
    a(f"v_mov_b32 v{T+4}, 0")
    a(f"buffer_store_dword v{vN}, v{T+4}, {sq(sMB)}, 0 offen sc1")
    if leak:
        a("s_memrealtime s[4:5]")
        a("s_waitcnt lgkmcnt(0)")
        a("s_sub_u32 s6, s4, s98" if leakat == "end" else "s_sub_u32 s6, s100, s98")
        a("s_min_u32 s6, s6, 20000")
        a(f"s_mul_i32 s6, s6, {leak}")
        a("L_leak:")
        a("s_memrealtime s[8:9]")
        a("s_waitcnt lgkmcnt(0)")
        a("s_sub_u32 s7, s8, s4")
        a("s_cmp_lt_u32 s7, s6")
        a("s_cbranch_scc1 L_leak")
    a("s_branch L_done")

    a("L_pubB:")
    a(f"s_mov_b64 exec, s[{sExB}:{sExB+1}]")
    lds_sum16(F, V, vVo, L_YPART, 1024, halves=1)
    embed(F)
    a(f"buffer_store_dwordx4 {q(F)}, v{vPB}, {sq(sMB)}, 0 offen sc1")
    stamp("pubB")
    a("L_done:")
    if prof:
        setexec(FULL)
        a("s_waitcnt lgkmcnt(0)")
        a(f"s_lshl4_add_u32 s{sT0}, s2, s{sW}")
        a(f"s_lshl_b32 s{sT0}, s{sT0}, 7")
        a(f"s_add_u32 s26, s26, s{sT0}")
        a("s_addc_u32 s27, s27, 0")
        a("s_add_u32 s26, s26, 0x10000000")
        a("s_addc_u32 s27, s27, 0")
        for i in range(22):
            a(f"v_mov_b32 v{K+i}, s{4+i}")
        a(f"v_mov_b32 v{T}, 0")
        setexec(1)
        for k in range(6):
            a(f"global_store_dwordx4 v{T}, {q(K+4*k)}, s[26:27] offset:{16*k}")
    a("L_end:")
    a("s_endpgm")
    body = a.finish()

    head = f"""; Fused decode step: sliding-window attention (32 heads x 2048 keys, batch 2) + SiLU FFN + sigmoid gate.
; @launch grid=(256,1,1) block=(1024,1,1) lds={LDS_BYTES}
.amdgcn_target "amdgcn-amd-amdhsa--gfx950"
.text
.globl {KN}
.p2align 12
.p2align 8
.type {KN},@function
"""
    tail = f""".section .rodata,"a"
.p2align 6
.amdhsa_kernel {KN}
  .amdhsa_next_free_vgpr 128
  .amdhsa_next_free_sgpr 102
  .amdhsa_accum_offset 128
  .amdhsa_group_segment_fixed_size 0
  .amdhsa_kernarg_size 96
  .amdhsa_user_sgpr_count 2
  .amdhsa_user_sgpr_kernarg_segment_ptr 1
  .amdhsa_system_sgpr_workgroup_id_x 1
.end_amdhsa_kernel
"""
    return head + body + tail, names, a.nnops

def write(name, **kw):
    sys.path.insert(0, "bench")
    import build
    src, names, nn = gen(**kw)
    open(f"gen/{name}.s", "w").write(src)
    build.build(f"gen/{name}.s")
    return names, nn

if __name__ == "__main__":
    print(write("k8"))
    write("L_k8", leak=10)
    write("L_k8_p", leak=10, prio0=True)
    write("L_k8_m", leak=10, midtouch=True)
    write("L_k8_pm", leak=10, prio0=True, midtouch=True)
    write("k8_pm", prio0=True, midtouch=True)
```

```python
import re

TRANS = ("v_exp_f32", "v_log_f32", "v_rcp_f32", "v_rsq_f32", "v_sqrt_f32", "v_sin_f32", "v_cos_f32", "v_rcp_iflag_f32")
RMW = ("v_fmac_", "v_dot2c_", "v_pk_fmac")
CAP = 20

def _regs(tok):
    tok = tok.strip()
    m = re.fullmatch(r"-?\|?([vsa])\[(\d+):(\d+)\]\|?", tok)
    if m:
        return m.group(1), list(range(int(m.group(2)), int(m.group(3)) + 1))
    m = re.fullmatch(r"-?\|?([vsa])(\d+)\|?", tok)
    if m:
        return m.group(1), [int(m.group(2))]
    if tok in ("vcc", "vcc_lo", "vcc_hi"):
        return "s", ["vcc"]
    if tok in ("exec", "exec_lo", "exec_hi"):
        return "s", ["exec"]
    return None, []

class Ins:
    def __init__(self, text):
        self.text = text
        t = text.split(";")[0].strip()
        self.label = t[:-1] if t.endswith(":") and " " not in t else None
        self.directive = t.startswith(".") and self.label is None
        self.op = "" if (self.label or self.directive or not t) else t.split()[0]
        self.vw, self.vr, self.sw, self.sr = set(), set(), set(), set()
        self.mfma_c = set()
        self.ab = set()
        if not self.op:
            return
        rest = t[len(self.op):]
        ops = [o.strip() for o in re.split(r",(?![^\[]*\])", rest)]
        last = ops[-1].split() if ops and ops[-1] else []
        mods = " ".join(last[1:])
        if last:
            ops[-1] = last[0]
        self.mods = mods
        self.dpp = any(k in t for k in ("row_shl", "row_shr", "row_ror", "row_newbcast", "row_bcast", "row_mirror", "row_half_mirror", "quad_perm"))
        op = self.op
        R = [_regs(o) for o in ops]
        def rd(i):
            k, r = R[i]
            (self.vr if k == "v" else self.sr if k == "s" else set()).update(r)
        def wr(i):
            k, r = R[i]
            (self.vw if k == "v" else self.sw if k == "s" else set()).update(r)
        self.valu = op.startswith("v_") and not op.startswith("v_mfma")
        self.mfma = op.startswith("v_mfma")
        self.vmem = op.startswith(("buffer_", "global_"))
        self.ds = op.startswith("ds_")
        self.trans = any(op.startswith(x) for x in TRANS)
        self.wide_store = False
        if self.mfma:
            wr(0); rd(1); rd(2); rd(3)
            self.ab = set(R[1][1]) | set(R[2][1])
            if R[3][0] == "v":
                self.mfma_c = set(R[3][1])
            self.d = tuple(R[0][1]); self.c = tuple(R[3][1]) if R[3][0] == "v" else None
        elif op.startswith("v_permlane"):
            wr(0); wr(1); rd(0); rd(1)
        elif op.startswith("v_cmp"):
            wr(0)
            for i in range(1, len(R)): rd(i)
        elif op.startswith(("v_add_co", "v_addc_co", "v_sub_co")):
            wr(0); wr(1)
            for i in range(2, len(R)): rd(i)
        elif self.valu:
            wr(0)
            for i in range(1, len(R)): rd(i)
            if any(op.startswith(x) for x in RMW) or self.dpp:
                rd(0)
            if op.startswith("v_cndmask") and len(R) == 3:
                self.sr.add("vcc")
        elif self.ds:
            if op.startswith("ds_read") or op.startswith("ds_bpermute") or op.startswith("ds_swizzle"):
                wr(0)
                for i in range(1, len(R)): rd(i)
            else:
                for i in range(len(R)): rd(i)
        elif self.vmem:
            if "load" in op or ("atomic" in op and "sc0" in mods):
                wr(0)
                for i in range(1, len(R)): rd(i)
            else:
                for i in range(len(R)): rd(i)
                if "dwordx4" in op or "dwordx3" in op:
                    self.wide_store = True
                    di = 0 if op.startswith("buffer_") else 1
                    self.store_data = set(R[di][1])
        elif op.startswith("s_"):
            if op.startswith(("s_cmp", "s_cbranch", "s_branch", "s_waitcnt", "s_nop", "s_barrier", "s_endpgm", "s_sleep", "s_setprio")):
                for i in range(len(R)): rd(i)
            else:
                wr(0)
                for i in range(1, len(R)): rd(i)
        self.branch = None
        if op.startswith(("s_cbranch", "s_branch")):
            self.branch = ops[0]
        self.uncond = op in ("s_branch", "s_endpgm")
        self.slots = 1
        if op == "s_nop":
            self.slots = int(ops[0], 0) + 1

def need(ins, st):
    n = 0
    def chk(key, req):
        nonlocal n
        if key in st:
            n = max(n, req - st[key])
    if not ins.op:
        return 0
    if ins.mfma:
        for r in ins.vr:
            chk(("vw", r), 2)
        for r in ins.ab:
            chk(("mw", r), 8)
        for r in ins.mfma_c:
            if ("mw", r) in st:
                same = st.get(("md", r)) is not None and MD.get(r) == ins.c
                if not same:
                    chk(("mw", r), 6)
        for r in ins.vw:
            if r not in ins.mfma_c and ("mw", r) in st:
                chk(("mw", r), 8)
        chk(("xw",), 4)
    if (ins.valu or ins.vmem or ins.ds or ins.mfma) and not ins.op.startswith("v_dot"):
        for r in ins.vr | ins.vw:
            chk(("dw", r), 3)
    if ins.valu:
        for r in ins.vr | ins.vw:
            chk(("mw", r), 8)
        for r in ins.vw:
            chk(("mc", r), 3)
            chk(("sd", r), 2)
        if ins.dpp:
            for r in ins.vr:
                chk(("vw", r), 2)
            chk(("xw",), 5)
        if not ins.trans:
            for r in ins.vr:
                chk(("tw", r), 1)
        else:
            for r in ins.vr:
                chk(("tw", r), 1)
        if ins.op.startswith(("v_readlane", "v_readfirstlane")):
            for r in ins.vr:
                chk(("vw", r), 1)
        if ins.op.startswith("v_permlane"):
            for r in ins.vr:
                chk(("vw", r), 2)
        for r in ins.sr:
            chk(("sw", r), 4 if ins.op.startswith(("v_readlane", "v_writelane")) else 2)
    if ins.vmem or ins.ds:
        for r in ins.vr | ins.vw:
            chk(("mw", r), 8)
        for r in ins.vr:
            chk(("tw", r), 1)
        for r in ins.sr:
            chk(("sw", r), 5)
        for r in ins.vw:
            chk(("sd", r), 1)
    return max(n, 0)

MD = {}

def age(st, k):
    return {key: a + k for key, a in st.items() if a + k < CAP}

def apply(ins, st):
    st = age(st, ins.slots) if ins.op else dict(st)
    if not ins.op:
        return st
    if ins.valu:
        for r in ins.vw:
            st[("vw", r)] = 0
            st.pop(("tw", r), None)
            if ins.trans:
                st[("tw", r)] = 0
            st.pop(("dw", r), None)
            if ins.op.startswith("v_dot"):
                st[("dw", r)] = 0
        for r in ins.sw:
            st[("sw", r)] = 0
            if r == "exec":
                st[("xw",)] = 0
    if ins.mfma:
        for r in ins.vw:
            st[("mw", r)] = 0
            st[("md", r)] = 0
            MD[r] = ins.d
        for r in ins.mfma_c:
            st[("mc", r)] = 0
    if ins.vmem and ins.wide_store:
        for r in ins.store_data:
            st[("sd", r)] = 0
    if ins.op.startswith("s_") and not ins.branch:
        for r in ins.sw:
            st.pop(("sw", r), None)
    return st

def merge(a, b):
    if a is None: return None if b is None else dict(b)
    if b is None: return dict(a)
    out = dict(a)
    for k, v in b.items():
        out[k] = min(v, out.get(k, 99))
    return out

class Asm:
    def __init__(self):
        self.lines = []
    def __call__(self, text):
        for t in text.strip("\n").split("\n"):
            t = t.strip()
            if t:
                self.lines.append(t)
    def finish(self):
        ins = [Ins(t) for t in self.lines]
        nops = [0] * len(ins)
        saved = {}
        for _ in range(12):
            changed = False
            cur = {}
            for i, x in enumerate(ins):
                if x.label:
                    cur = merge(cur, saved.get(x.label))
                    continue
                if cur is None or not x.op:
                    continue
                st = age(cur, nops[i]) if nops[i] else cur
                k = need(x, st)
                if k > 0:
                    nops[i] += k
                    st = age(st, k)
                    changed = True
                cur = apply(x, st)
                if x.branch:
                    m = merge(saved.get(x.branch), cur)
                    if m != saved.get(x.branch):
                        saved[x.branch] = m
                        changed = True
                if x.uncond:
                    cur = None
            if not changed:
                break
        out = []
        for i, x in enumerate(ins):
            k = nops[i]
            while k > 0:
                c = min(k, 16)
                out.append(f"    s_nop {c-1}")
                k -= c
            if x.label or x.directive or x.text.startswith(";"):
                out.append(x.text)
            else:
                out.append("    " + x.text)
        self.nnops = sum(nops)
        return "\n".join(out) + "\n"
```

```python
import sys
from asmlib import Asm

KN = "gated_mix__sliding_block_cached__dense_activation_silu__decode_kernel"

MB0 = 0x1000
MBA = 0x81000
MBB = 0xC1000
MBEND = 0xF1000
OOB = 0x40000000

L_PART = 0
L_OPART = 24576
L_MSG = L_OPART + 16 * 528
L_Q = L_MSG + 8 * 528
L_ZERO = L_Q + 256
L_QFLAG = L_ZERO + 16
L_OCNT = L_ZERO + 20
L_AF = L_ZERO + 24
L_MC = L_ZERO + 28
L_HACT = L_ZERO + 32
L_WMAX = L_HACT + 512
L_GATE = L_WMAX + 64
L_YPART = L_GATE + 16
L_M0 = L_YPART + 8 * 1024
L_MA = L_M0 + 2048
LDS_BYTES = L_MA + 1024

vL, vM, vKo, vVo = 1, 2, 6, 7
T = 8
vg, vr = 9, 10
K, V, P0, F = 16, 48, 80, 96
vYW, vPB, vOUT, vP0a = 84, 85, 86, 87
vHF, vMx, vN, G, vWo, vW2 = 88, 90, 91, 92, 94, 95
sK, sV, sWQ, sW1, sX, sWO, sW2, sMB, sOUT, sG = 28, 32, 36, 40, 44, 48, 52, 56, 60, 64
sTA, sTB, sKV, sMK = 68, 69, 70, 71
sO3, sOdd, sRmax = 72, 73, 74
sH, sJ, sB, sS, sW, sN = 76, 77, 78, 79, 80, 81
sExB = 78
sE = 82
sC = 86
sCnt, sT0, sT1, sT2 = 88, 89, 90, 91
sX0, sX1 = 92, 93
sL2E, sSC, sHI = 94, 95, 96
sXcc, sFb, sRem = 0, 1, 3
SPIN = 50000
NFB = 12
FULL = (1 << 64) - 1

def q(r, n=4):
    return f"v[{r}:{r+n-1}]"
def sq(r, n=4):
    return f"s[{r}:{r+n-1}]"

def gen(prof=False, flag="nt", spin=SPIN, leak=0, depthA=1, depthB=1, sleepA=2, sleepB=2, outflag="", prio=True, nk0=4, leakat="end", touch=None, prio0=False, midtouch=False, pubflag="", hmap=0, pubAflag="", qearly=False, qsleep=1, firstN=None, bq=False, nob0=False):
    a = Asm()
    stamp_id = [0]
    names = []
    def stamp(name):
        if leak and name == leakat:
            a("s_memrealtime s[100:101]")
        if prof and (prof is True or name in prof):
            if name in names:
                i = names.index(name)
            else:
                i = stamp_id[0]; stamp_id[0] += 1
                names.append(name)
            assert i < 11
            a(f"s_memrealtime s[{4+2*i}:{5+2*i}]")

    def srd(dst, lo, off, nrec):
        if off is None:
            a(f"s_mov_b64 s[{dst}:{dst+1}], s[{lo}:{lo+1}]")
        else:
            a(f"s_add_u32 s{dst}, s{lo}, {off}")
            a(f"s_addc_u32 s{dst+1}, s{lo+1}, 0")
        a(f"s_mov_b32 s{dst+2}, {nrec}")
        a(f"s_mov_b32 s{dst+3}, 0x20000")

    def embed(r):
        for k in range(4):
            a(f"v_perm_b32 v{r+k}, v{r+k}, v{vN}, s{sE+k}")

    def tagbits(r, t0, t1):
        a(f"v_perm_b32 v{t0}, v{r+1}, v{r}, s{sC}")
        a(f"v_perm_b32 v{t1}, v{r+3}, v{r+2}, s{sC+1}")
        a(f"v_or_b32 v{t0}, v{t0}, v{t1}")

    def untag(r, n=4, dst=None):
        for k in range(n):
            a(f"v_and_b32 v{(dst if dst is not None else r)+k}, s{sMK}, v{r+k}")

    def setexec(m):
        lo, hi = m & 0xffffffff, m >> 32
        def lit(x):
            return "-1" if x == 0xffffffff else (str(x) if x <= 64 else hex(x))
        if m == FULL:
            a("s_mov_b64 exec, -1")
        elif hi == 0 and lo <= 64:
            a(f"s_mov_b64 exec, {lo}")
        else:
            a(f"s_mov_b32 exec_lo, {lit(lo)}")
            a("s_mov_b32 exec_hi, exec_lo" if hi == lo else f"s_mov_b32 exec_hi, {lit(hi)}")

    RED = ("quad_perm:[1,0,3,2] row_mask:0xf bank_mask:0xf", "quad_perm:[2,3,0,1] row_mask:0xf bank_mask:0xf",
           "row_half_mirror row_mask:0xf bank_mask:0xf", "row_mirror row_mask:0xf bank_mask:0xf",
           "row_bcast:15 row_mask:0xa bank_mask:0xf", "row_bcast:31 row_mask:0xc bank_mask:0xf")
    def wave_reduce(op, r):
        for m in RED:
            a(f"{op}_dpp v{r}, v{r}, v{r} {m}")

    def lds_sum16(acc, buf, vaddr, base, stride, halves=2, coarse=False):
        for half in range(halves):
            for k in range(8):
                a(f"ds_read_b128 {q(buf+4*k)}, v{vaddr} offset:{base + (8*half+k)*stride}")
            first = 0
            if half == 0:
                a("s_waitcnt lgkmcnt(4)" if coarse else "s_waitcnt lgkmcnt(6)")
                a(f"v_pk_add_f32 {q(acc,2)}, {q(buf,2)}, {q(buf+4,2)}")
                a(f"v_pk_add_f32 {q(acc+2,2)}, {q(buf+2,2)}, {q(buf+6,2)}")
                first = 2
            for k in range(first, 8):
                if not coarse:
                    a(f"s_waitcnt lgkmcnt({7-k})")
                elif k == 0:
                    a("s_waitcnt lgkmcnt(4)")
                elif k == 4:
                    a("s_waitcnt lgkmcnt(0)")
                a(f"v_pk_add_f32 {q(acc,2)}, {q(acc,2)}, {q(buf+4*k,2)}")
                a(f"v_pk_add_f32 {q(acc+2,2)}, {q(acc+2,2)}, {q(buf+4*k+2,2)}")

    def fallback_store(buf, vaddr):
        a(f"ds_read_b128 {q(buf)}, v{vVo} offset:{L_M0}")
        a(f"ds_read_b128 {q(buf+4)}, v{vVo} offset:{L_M0 + 1024}")
        a(f"s_lshl3_add_u32 s{sT1}, s{sH}, s{sJ}")
        a(f"s_lshl_b32 s{sT1}, s{sT1}, 11")
        a(f"s_add_u32 s{sT1}, s{sT1}, {MB0}")
        a(f"v_add_u32 v{vaddr}, s{sT1}, v{vVo}")
        a("s_waitcnt lgkmcnt(0)")
        a(f"buffer_store_dwordx4 {q(buf)}, v{vaddr}, {sq(sMB)}, 0 offen sc1")
        setexec(0xffffffff)
        a(f"buffer_store_dwordx4 {q(buf+4)}, v{vaddr}, {sq(sMB)}, 0 offen offset:1024 sc1")
        setexec(FULL)

    def fallback_storeA(buf, vaddr):
        setexec((1 << 33) - 1)
        a(f"ds_read_b128 {q(buf)}, v{vVo} offset:{L_MA}")
        a(f"s_lshl3_add_u32 s{sT1}, s{sH}, s{sJ}")
        a(f"s_lshl_b32 s{sT1}, s{sT1}, 10")
        a(f"s_add_u32 s{sT1}, s{sT1}, {MBA}")
        a(f"v_add_u32 v{vaddr}, s{sT1}, v{vVo}")
        a("s_waitcnt lgkmcnt(0)")
        a(f"buffer_store_dwordx4 {q(buf)}, v{vaddr}, {sq(sMB)}, 0 offen sc1")

    def kv_loads(base, voff, srdreg):
        for n in range(8):
            so = sTA if n < 4 else sTB
            a(f"buffer_load_dwordx4 {q(base+4*n)}, v{voff}, {sq(srdreg)}, s{so} offen offset:{1024*(n%4)} {flag}")

    def lds_spin(label, off, target, sleep):
        a(f"v_mov_b32 v{F+28}, 0")
        a(f"s_mov_b32 s{sCnt}, {spin*40}")
        a(f"L_{label}:")
        a(f"ds_read_b32 v{F+29}, v{F+28} offset:{off}")
        a("s_waitcnt lgkmcnt(0)")
        a(f"v_readfirstlane_b32 s{sT0}, v{F+29}")
        a(f"s_cmp_ge_u32 s{sT0}, {target}")
        a(f"s_cbranch_scc1 L_{label}_ok")
        if sleep:
            a(f"s_sleep {sleep}")
        a(f"s_sub_u32 s{sCnt}, s{sCnt}, 1")
        a(f"s_cbranch_scc0 L_{label}")
        a(f"L_{label}_ok:")

    EXIT = "L_done" if prof else "L_exit"
    a(f"{KN}:")
    a("s_cmp_ge_u32 s2, 256")
    a("s_cbranch_scc1 L_end")
    if prof or leak:
        a("s_memrealtime s[98:99]")
    a("s_load_dwordx16 s[4:19], s[0:1], 0")
    a("s_load_dwordx8 s[20:27], s[0:1], 64")
    a(f"v_lshrrev_b32 v{T}, 6, v0")
    a(f"v_and_b32 v{vL}, 63, v0")
    a(f"v_readfirstlane_b32 s{sW}, v{T}")
    if hmap == 0:
        a(f"s_and_b32 s{sH}, s2, 7")
        a(f"s_bfe_u32 s{sT0}, s2, 0x20003")
        a(f"s_lshl3_add_u32 s{sH}, s{sT0}, s{sH}")
        a(f"s_lshr_b32 s{sJ}, s2, 5")
    elif hmap == 1:
        a(f"s_lshr_b32 s{sH}, s2, 3")
        a(f"s_and_b32 s{sJ}, s2, 7")
    elif hmap == 2:
        a(f"s_lshr_b32 s{sJ}, s2, 5")
        a(f"s_cmp_eq_u32 s{sJ}, 5")
        a(f"s_cselect_b32 s{sT0}, 1, 0")
        a(f"s_xor_b32 s{sT1}, s2, s{sT0}")
        a(f"s_and_b32 s{sH}, s{sT1}, 7")
        a(f"s_bfe_u32 s{sT0}, s2, 0x20003")
        a(f"s_lshl3_add_u32 s{sH}, s{sT0}, s{sH}")
    elif hmap == 3:
        a(f"s_lshr_b32 s{sJ}, s2, 5")
        a(f"s_and_b32 s{sT0}, s{sJ}, 1")
        a(f"s_lshl_b32 s{sT0}, s{sT0}, 2")
        a(f"s_xor_b32 s{sT1}, s2, s{sT0}")
        a(f"s_and_b32 s{sH}, s{sT1}, 7")
        a(f"s_bfe_u32 s{sT0}, s2, 0x20003")
        a(f"s_lshl3_add_u32 s{sH}, s{sT0}, s{sH}")
    a(f"v_lshrrev_b32 v{vg}, 4, v{vL}")
    a(f"v_and_b32 v{vr}, 15, v{vL}")
    a(f"v_lshl_add_u32 v{T+3}, s{sW}, 2, v{vg}")
    a(f"v_lshlrev_b32 v{T+4}, 13, v{T+3}")
    a(f"v_lshl_add_u32 v{T+4}, v{vr}, 4, v{T+4}")
    a(f"v_add_u32 v{T+5}, {64*8192}, v{T+4}")
    a(f"v_mul_u32_u24 v{T+6}, 3456, v{T+3}")
    a(f"v_lshl_add_u32 v{T+6}, v{vr}, 4, v{T+6}")
    a(f"v_mov_b32 v{T+7}, {hex(OOB)}")
    a(f"v_cmp_gt_u32 vcc, 8, v{vr}")
    a(f"s_mul_i32 s{sT0}, s{sJ}, 80")
    a(f"s_mul_i32 s{sT1}, s{sJ}, {80*8192}")
    a(f"v_cndmask_b32 v{T+6}, v{T+7}, v{T+6}, vcc")
    a(f"v_add_u32 v{T+7}, {64*3456}, v{T+6}")
    xo = V + 18
    a(f"v_add_u32 v{xo}, s{sT0}, v{T+3}")
    a(f"v_bfe_u32 v{xo+1}, v{vL}, 3, 1")
    a(f"v_mul_u32_u24 v{xo+1}, 640, v{xo+1}")
    a(f"v_add_lshl_u32 v{xo}, v{xo}, v{xo+1}, 1")
    a(f"s_lshl_b32 s{sT2}, s{sH}, 8")
    a(f"s_add_u32 s{sT1}, s{sT1}, s{sT2}")
    a(f"s_mul_i32 s{sT2}, s{sJ}, {80*3456}")
    a(f"s_lshl_b32 s{sX0}, s{sH}, 7")
    a(f"s_add_u32 s{sT2}, s{sT2}, s{sX0}")
    a(f"s_cmp_lt_u32 s{sH}, 27")
    a(f"s_cselect_b32 s{sX0}, {79*3456+128}, 0")
    a(f"s_cselect_b32 s{sX1}, {63*1280+192}, 0")
    a(f"s_lshr_b32 s{sB}, s{sJ}, 2")
    a(f"s_lshl_b32 s{sKV}, s{sB}, 5")
    a(f"s_add_u32 s{sKV}, s{sKV}, s{sH}")
    a(f"s_lshl_b32 s{sKV}, s{sKV}, 4")
    a(f"s_and_b32 s{sS}, s{sJ}, 3")
    a(f"s_add_u32 s{sKV}, s{sKV}, s{sS}")
    a(f"s_add_u32 s{sKV}, s{sKV}, 12")
    a(f"s_lshl4_add_u32 s{sKV}, s{sKV}, s{sW}")
    a(f"s_lshl_b32 s{sKV}, s{sKV}, 13")
    a("s_waitcnt lgkmcnt(0)")
    if leak:
        stamp("kern0")
    if prof:
        a("s_memrealtime s[100:101]")
    if touch is not None:
        a(f"s_cmp_eq_u32 s{sW}, {touch}")
        a("s_cbranch_scc0 L_notouch")
        a(f"v_mov_b32 v{F}, 0")
        a(f"s_add_u32 s28, s6, s{sKV}"); a("s_addc_u32 s29, s7, 0")
        a(f"s_add_u32 s30, s8, s{sKV}"); a("s_addc_u32 s31, s9, 0")
        a(f"s_mul_i32 s34, s{sH}, {128*1280}"); a("s_add_u32 s32, s12, s34"); a("s_addc_u32 s33, s13, 0")
        a(f"s_mul_i32 s34, s{sH}, {64*1280}"); a(f"s_cmp_lt_u32 s{sH}, 27"); a("s_cselect_b32 s34, s34, 0"); a("s_add_u32 s36, s18, s34"); a("s_addc_u32 s37, s19, 0")
        setexec(1)
        a(f"global_load_dword v{F+1}, v{F}, s[28:29] nt")
        a(f"global_load_dword v{F+2}, v{F}, s[30:31] nt")
        a(f"global_load_dword v{F+3}, v{F}, s[32:33] nt")
        a(f"global_load_dword v{F+4}, v{F}, s[36:37] nt")
        a(f"global_load_dword v{F+5}, v{F}, s[26:27] offset:2048 nt")
        a(f"global_load_dword v{F+6}, v{F}, s[22:23] nt")
        setexec(FULL)
        a("L_notouch:")
    srd(sX, 4, None, 2560)
    srd(sWQ, 10, f"s{sT1}", 79*8192+256)
    srd(sW1, 16, f"s{sT2}", f"s{sX0}")
    x0, x1 = V + 16, V + 17
    wq0, w10, wq1, w11 = V, V + 4, V + 8, V + 12
    a(f"buffer_load_dwordx4 {q(wq0)}, v{T+4}, {sq(sWQ)}, 0 offen {flag}")
    if bq:
        a("s_barrier")
    a(f"buffer_load_dwordx4 {q(w10)}, v{T+6}, {sq(sW1)}, 0 offen {flag}")
    setexec(0x0101010101010101)
    a(f"buffer_load_ushort v{x0}, v{xo}, {sq(sX)}, 0 offen")
    setexec(FULL)
    a("s_load_dword s97, s[26:27], 0")
    a(f"s_cmp_ge_u32 s{sW}, 4")
    a("s_cbranch_scc1 L_notile1")
    a(f"buffer_load_dwordx4 {q(wq1)}, v{T+5}, {sq(sWQ)}, 0 offen {flag}")
    a(f"buffer_load_dwordx4 {q(w11)}, v{T+7}, {sq(sW1)}, 0 offen {flag}")
    setexec(0x0101010101010101)
    a(f"buffer_load_ushort v{x1}, v{xo}, {sq(sX)}, 0 offen offset:128")
    setexec(FULL)
    a("L_notile1:")
    gx, gw = F + 16, F + 24
    a(f"s_cmp_lt_u32 s{sW}, 14")
    a("s_cbranch_scc1 L_nogate_ld")
    srd(sG, 20, None, 1280)
    a(f"s_sub_u32 s{sT1}, s{sW}, 14")
    a(f"s_mul_i32 s{sT1}, s{sT1}, 1280")
    a(f"v_lshlrev_b32 v{F+29}, 4, v{vL}")
    a(f"v_lshlrev_b32 v{F+30}, 2, v{vL}")
    a(f"buffer_load_dwordx4 {q(gx)}, v{F+29}, {sq(sX)}, s{sT1} offen")
    a(f"buffer_load_dword v{gx+4}, v{F+30}, {sq(sX)}, s{sT1} offen offset:1024")
    a(f"buffer_load_dwordx4 {q(gw)}, v{F+29}, {sq(sG)}, 0 offen")
    a(f"buffer_load_dword v{gw+4}, v{F+30}, {sq(sG)}, 0 offen offset:1024")
    a("L_nogate_ld:")
    srd(sK, 6, f"s{sKV}", 8192)
    a(f"v_lshrrev_b32 v{T+3}, 2, v{vr}")
    a(f"v_lshlrev_b32 v{T+3}, 8, v{T+3}")
    a(f"v_lshl_add_u32 v{T+3}, v{vg}, 6, v{T+3}")
    a(f"v_and_b32 v{T+4}, 3, v{vL}")
    a(f"v_lshl_add_u32 v{vKo}, v{T+4}, 4, v{T+3}")
    a(f"v_lshlrev_b32 v{vVo}, 4, v{vL}")
    a(f"s_lshr_b32 s{sT0}, s2, 3")
    a(f"s_lshr_b32 s{sT1}, s{sW}, 1")
    a(f"s_add_u32 s{sT0}, s{sT0}, s{sT1}")
    a(f"s_and_b32 s{sT0}, s{sT0}, 1")
    a(f"s_lshl_b32 s{sTA}, s{sT0}, 12")
    a(f"s_xor_b32 s{sTB}, s{sTA}, 4096")
    if not nob0:
        a("s_barrier")
    if leak:
        stamp("B0")
    a(f"s_cmp_ge_u32 s{sW}, {nk0}")
    a("s_cbranch_scc1 L_noK0")
    kv_loads(K, vKo, sK)
    a("L_noK0:")
    srd(sV, 8, f"s{sKV}", 8192)
    srd(sMB, 26, None, MBEND)
    a(f"s_and_b32 s{sOdd}, s{sJ}, 1")
    a(f"s_mul_i32 s{sT1}, s{sJ}, 160")
    a(f"s_lshl_b32 s{sT2}, s{sOdd}, 5")
    a(f"s_add_u32 s{sT1}, s{sT1}, s{sT2}")
    a(f"s_mul_i32 s{sT0}, s{sH}, {128*1280}")
    a(f"s_add_u32 s{sT0}, s{sT0}, s{sT1}")
    srd(sWO, 12, f"s{sT0}", 127*1280+192)
    a(f"s_mul_i32 s{sT0}, s{sH}, {64*1280}")
    a(f"s_add_u32 s{sT0}, s{sT0}, s{sT1}")
    srd(sW2, 18, f"s{sT0}", f"s{sX1}")
    a(f"s_lshl_b32 s{sT2}, s{sOdd}, 2")
    a(f"s_sub_u32 s{sRmax}, 12, s{sT2}")
    srd(sOUT, 22, None, 2560)
    if prof:
        a("s_waitcnt lgkmcnt(0)")
        a("s_mov_b64 s[4:5], s[98:99]"); a("s_mov_b64 s[6:7], s[100:101]")
        stamp_id[0] = 2; names.append("start"); names.append("kern")
    a(f"s_mov_b32 s{sE}, 0x07060500")
    for k in range(1, 4):
        a(f"s_add_u32 s{sE+k}, s{sE}, {k}")
    a(f"s_mov_b32 s{sC}, 0x0c0c0400")
    a(f"s_mov_b32 s{sC+1}, 0x04000c0c")
    a(f"s_mov_b32 s{sL2E}, 0x3fb8aa3b")
    a(f"s_mov_b32 s{sSC}, 0x3db504f3")
    a(f"s_mov_b32 s{sHI}, 0xffff0000")
    a(f"s_mov_b32 s{sMK}, 0xffffff00")
    a(f"s_getreg_b32 s{sXcc}, hwreg(HW_REG_XCC_ID, 0, 4)")
    a(f"s_lshl_b32 s{sXcc}, s{sXcc}, 8")
    a(f"s_mov_b32 s{sX0}, {4*1280}")
    a(f"s_mov_b32 s{sX1}, {8*1280}")
    a(f"s_mov_b32 s{sO3}, {12*1280}")
    a(f"v_and_b32 v{T+3}, 1, v{vL}")
    a(f"v_lshlrev_b32 v{T+3}, 4, v{T+3}")
    a(f"v_mov_b32 v{T+4}, 0xffff")
    a(f"v_lshlrev_b32 v{T+4}, v{T+3}, v{T+4}")
    a(f"v_bfe_u32 v{T+3}, v{vL}, 1, 2")
    for jj in range(4):
        a(f"v_cmp_eq_u32 vcc, {jj}, v{T+3}")
        a(f"v_cndmask_b32 v{vM+jj}, 0, v{T+4}, vcc")
    a(f"v_mov_b32 v{T+4}, {hex(OOB)}")
    a(f"v_lshlrev_b32 v{T+3}, 4, v{vr}")
    a(f"v_cmp_gt_u32 vcc, s{sRmax}, v{vr}")
    a(f"s_mul_i32 s{sT0}, s{sW}, {16*1280}")
    a(f"s_mul_i32 s{sT1}, s{sW}, {8*1280}")
    a(f"v_cndmask_b32 v{T+3}, v{T+4}, v{T+3}, vcc")
    a(f"v_mul_u32_u24 v{T+4}, 1280, v{vg}")
    a(f"v_add_u32 v{T+3}, v{T+3}, v{T+4}")
    a(f"v_add_u32 v{vWo}, s{sT0}, v{T+3}")
    a(f"v_add_u32 v{vW2}, s{sT1}, v{T+3}")
    a(f"s_and_b32 s{sT0}, s{sW}, 3")
    a(f"s_lshl_b32 s{sT0}, s{sT0}, 7")
    a(f"s_lshl_b32 s{sT1}, s{sH}, 14")
    a(f"s_add_u32 s{sT0}, s{sT0}, s{sT1}")
    a(f"s_lshl_b32 s{sT1}, s{sB}, 9")
    a(f"s_cmp_lt_u32 s{sW}, 4")
    a(f"s_cselect_b32 s{sT1}, s{sT1}, 1024" if qearly else f"s_cselect_b32 s{sT1}, 1024, s{sT1}")
    a(f"s_add_u32 s{sT0}, s{sT0}, s{sT1}")
    a(f"s_add_u32 s{sT0}, s{sT0}, {MB0}")
    a(f"v_and_b32 v{T+3}, 7, v{vL}")
    a(f"v_lshlrev_b32 v{T+3}, 11, v{T+3}")
    a(f"v_lshrrev_b32 v{T+4}, 3, v{vL}")
    a(f"v_lshl_add_u32 v{T+3}, v{T+4}, 4, v{T+3}")
    a(f"v_add_u32 v{vP0a}, s{sT0}, v{T+3}")
    a(f"s_lshl3_add_u32 s{sT1}, s{sH}, s{sJ}")
    a(f"s_lshl_b32 s{sT1}, s{sT1}, 11")
    a(f"s_lshl_b32 s{sT0}, s{sW}, 10")
    a(f"s_add_u32 s{sT1}, s{sT1}, s{sT0}")
    a(f"s_add_u32 s{sT1}, s{sT1}, {MB0}")
    a(f"v_add_u32 v{vYW}, s{sT1}, v{vVo}")
    a(f"v_add_u32 v{vPB}, s{sT0}, v{vVo}")
    a(f"s_mul_i32 s{sT0}, s{sW}, 1536")
    a(f"v_and_b32 v{T+3}, 7, v{vL}")
    a(f"v_lshl_add_u32 v{T+3}, v{vg}, 5, v{T+3}")
    a(f"v_lshl_add_u32 v{T+3}, v{T+3}, 2, s{sT0}")
    a(f"v_bfe_u32 v{T+4}, v{vL}, 3, 1")
    a(f"v_lshl_add_u32 v{T+5}, v{T+4}, 9, v{T+3}")
    a(f"v_lshl_add_u32 v{T+6}, v{T+4}, 8, v{T+3}")
    a(f"s_cmp_eq_u32 s{sW}, 2")
    a("s_cbranch_scc0 L_nozero")
    a(f"v_mov_b32 v{T+3}, 0")
    a(f"v_lshlrev_b32 v{T+4}, 2, v{vL}")
    setexec(0xff)
    a(f"ds_write_b32 v{T+4}, v{T+3} offset:{L_ZERO}")
    setexec(FULL)
    a("L_nozero:")

    Dq, Dh, B0, B1 = F, F + 4, F + 8, F + 12
    a(f"s_cmp_ge_u32 s{sW}, {nk0}")
    a("s_cbranch_scc1 L_w1late")
    a("s_waitcnt vmcnt(8)")
    a("s_branch L_w1ok")
    a("L_w1late:")
    a("s_waitcnt vmcnt(0)")
    a("L_w1ok:")
    stamp("w_in")
    def xbcast(x):
        a(f"v_lshl_or_b32 v{x}, v{x}, 16, v{x}")
        a(f"v_mov_b32_dpp v{x}, v{x} row_newbcast:0 row_mask:0xf bank_mask:0x3")
        a(f"v_mov_b32_dpp v{x}, v{x} row_newbcast:8 row_mask:0xf bank_mask:0xc")
    xbcast(x0)
    for jj in range(4):
        a(f"v_and_b32 v{B0+jj}, v{x0}, v{vM+jj}")
    a(f"v_mfma_f32_16x16x32_bf16 {q(Dq)}, {q(wq0)}, {q(B0)}, 0")
    a(f"v_mfma_f32_16x16x32_bf16 {q(Dh)}, {q(w10)}, {q(B0)}, 0")
    a(f"s_cmp_ge_u32 s{sW}, 4")
    a("s_cbranch_scc1 L_nomfma1")
    xbcast(x1)
    for jj in range(4):
        a(f"v_and_b32 v{B1+jj}, v{x1}, v{vM+jj}")
    a(f"v_mfma_f32_16x16x32_bf16 {q(Dq)}, {q(wq1)}, {q(B1)}, {q(Dq)}")
    a(f"v_mfma_f32_16x16x32_bf16 {q(Dh)}, {q(w11)}, {q(B1)}, {q(Dh)}")
    a("L_nomfma1:")
    for jr in range(4):
        a(f"ds_write_b32 v{T+5}, v{Dq+jr} offset:{L_PART + 32*jr}")
    setexec(0xffffffff)
    for jr in range(4):
        a(f"ds_write_b32 v{T+6}, v{Dh+jr} offset:{L_PART + 1024 + 32*jr}")
    setexec(FULL)
    a("s_waitcnt lgkmcnt(0)")
    a(f"s_mul_i32 s{sN}, s97, 0x9E3779B1")
    a(f"s_add_u32 s{sN}, s{sN}, 0x7F4A7C15")
    a(f"v_mov_b32 v{vN}, s{sN}")
    a("s_barrier")
    stamp("B1")
    a(f"s_cmp_gt_u32 s{sW}, 1")
    a("s_cbranch_scc1 L_nopub0")
    if prio0:
        a("s_setprio 3")
    lds_sum16(F, V, vPB, L_PART, 1536, coarse=True)
    embed(F)
    a(f"s_cmp_eq_u32 s{sW}, 0")
    a("s_cbranch_scc1 L_pub0_full")
    setexec(0xffffffff)
    a("L_pub0_full:")
    a(f"buffer_store_dwordx4 {q(F)}, v{vYW}, {sq(sMB)}, 0 offen {pubflag}")
    a(f"ds_write_b128 v{vPB}, {q(F)} offset:{L_M0}")
    setexec(FULL)
    a("s_waitcnt lgkmcnt(0)")
    if prio0:
        a("s_setprio 0")
    stamp("pub0")
    a("L_nopub0:")
    a(f"s_cmp_lt_u32 s{sW}, {nk0}")
    a("s_cbranch_scc1 L_kdone")
    a(f"s_cmp_lt_u32 s{sW}, 14")
    a("s_cbranch_scc0 L_gate")
    a("L_nogate:")
    kv_loads(K, vKo, sK)
    a("L_kdone:")
    a("s_barrier")
    if leak:
        stamp("Bk")
    if qearly:
        a(f"s_cmp_ge_u32 s{sW}, 8")
        a("s_cbranch_scc1 L_nopollq")
        a(f"buffer_load_dwordx4 {q(P0)}, v{vP0a}, {sq(sMB)}, 0 offen sc1")
        a("L_nopollq:")
        kv_loads(V, vVo, sV)
    else:
        a(f"s_sub_u32 s{sT0}, s{sW}, 4")
        a(f"s_cmp_ge_u32 s{sT0}, 4")
        a("s_cbranch_scc1 L_nopollq")
        a(f"buffer_load_dwordx4 {q(P0)}, v{vP0a}, {sq(sMB)}, 0 offen sc1")
        a("L_nopollq:")
        kv_loads(V, vVo, sV)
        a(f"s_cmp_ge_u32 s{sW}, 4")
        a("s_cbranch_scc1 L_nopollh")
        a(f"buffer_load_dwordx4 {q(P0)}, v{vP0a}, {sq(sMB)}, 0 offen sc1")
        a("L_nopollh:")
    if midtouch:
        a(f"s_cmp_eq_u32 s{sW}, 2")
        a("s_cbranch_scc0 L_nomid")
        a(f"v_mov_b32 v{F}, 0")
        setexec(1)
        a(f"buffer_load_dword v{vYW}, v{F}, {sq(sWO)}, 0 offen nt")
        a(f"buffer_load_dword v{vPB}, v{F}, {sq(sW2)}, 0 offen nt")
        a(f"buffer_load_dword v{vOUT}, v{F}, {sq(sOUT)}, 0 offen nt")
        setexec(FULL)
        a("L_nomid:")
    stamp("viss")
    a(f"s_cmp_lt_u32 s{sW}, 8")
    a("s_cbranch_scc1 L_nobv")
    a("s_barrier")
    a("L_nobv:")
    bta = [T, T + 3, T + 4, T + 5]
    a(f"v_bfe_u32 v{F+24}, v{vL}, 2, 2")
    a(f"v_lshl_add_u32 v{F+24}, v{vg}, 2, v{F+24}")
    a(f"v_lshlrev_b32 v{F+24}, 4, v{F+24}")
    a(f"v_add_u32 v{F+24}, {L_Q}, v{F+24}")
    a(f"v_and_b32 v0, 3, v{vL}")
    a(f"v_mov_b32 v{F+25}, {L_ZERO}")
    for t in range(4):
        a(f"v_cmp_eq_u32 vcc, {t}, v0")
        a(f"v_cndmask_b32 v{bta[t]}, v{F+25}, v{F+24}, vcc")
    a(f"s_cmp_lt_u32 s{sW}, 8")
    a("s_cbranch_scc1 L_lo1")
    a("s_waitcnt vmcnt(8)")
    a("s_branch L_qwait")

    a("L_lo1:")
    if qearly:
        a("s_waitcnt vmcnt(8)")
    else:
        a(f"s_cmp_lt_u32 s{sW}, 4")
        a("s_cbranch_scc1 L_p0h")
        a("s_waitcnt vmcnt(8)")
        a("s_branch L_p0")
        a("L_p0h:")
        a("s_waitcnt vmcnt(0)")
    a("L_p0:")
    a(f"s_mov_b32 s{sCnt}, {spin}")
    a("L_p0l:")
    tagbits(P0, F + 24, F + 25)
    a(f"v_cmp_ne_u32 vcc, s{sN}, v{F+24}")
    a("s_cbranch_vccz L_p0ok")
    a(f"s_sub_u32 s{sCnt}, s{sCnt}, 1")
    a("s_cbranch_scc1 L_p0ok")
    a(f"s_cmp_eq_u32 s{sCnt}, {spin - 1}")
    a("s_cbranch_scc1 L_p0fb")
    a("L_p0re:")
    a(f"buffer_load_dwordx4 {q(P0)}, v{vP0a}, {sq(sMB)}, 0 offen sc1")
    a("s_waitcnt vmcnt(0)")
    a("s_branch L_p0l")
    a("L_p0ok:")
    if prof and "p0cnt" in prof:
        i = stamp_id[0]; stamp_id[0] += 1; names.append("p0cnt")
        a(f"s_sub_u32 s{4+2*i}, {spin}, s{sCnt}")
        a(f"s_add_u32 s{4+2*i}, s{4+2*i}, 1")
        a(f"s_mov_b32 s{5+2*i}, 0")
    untag(P0)
    for m in ("quad_perm:[1,0,3,2]", "quad_perm:[2,3,0,1]", "row_half_mirror"):
        for k in range(4):
            a(f"v_add_f32_dpp v{P0+k}, v{P0+k}, v{P0+k} {m} row_mask:0xf bank_mask:0xf")
    a(f"v_lshrrev_b32 v{F+24}, 3, v{vL}")
    a(f"s_and_b32 s{sT0}, s{sW}, 3")
    a(f"v_lshl_add_u32 v{F+24}, s{sT0}, 3, v{F+24}")
    a(f"s_cmp_lt_u32 s{sW}, 4")
    a("s_cbranch_scc0 L_hpath" if qearly else "s_cbranch_scc1 L_hpath")
    a(f"v_cvt_pk_bf16_f32 v{P0}, v{P0}, v{P0+1}")
    a(f"v_cvt_pk_bf16_f32 v{P0+1}, v{P0+2}, v{P0+3}")
    a(f"v_lshlrev_b32 v{F+25}, 3, v{F+24}")
    setexec(0x0101010101010101)
    a(f"ds_write_b64 v{F+25}, {q(P0,2)} offset:{L_Q}")
    setexec(1)
    a(f"v_mov_b32 v{F+24}, 0")
    a(f"v_mov_b32 v{F+25}, 1")
    a("s_waitcnt lgkmcnt(0)")
    a(f"ds_add_u32 v{F+24}, v{F+25} offset:{L_QFLAG}")
    setexec(FULL)
    a("s_branch L_qwait")
    a("L_hpath:")
    for k in range(4):
        a(f"v_cvt_pk_bf16_f32 v{P0+k}, v{P0+k}, v{P0+k}")
    for k in range(4):
        a(f"v_and_b32 v{P0+k}, s{sHI}, v{P0+k}")
    for k in range(4):
        a(f"v_mul_f32 v{F+26+k}, s{sL2E}, v{P0+k}")
    for k in range(4):
        a(f"v_exp_f32 v{F+26+k}, -v{F+26+k}")
    for k in range(4):
        a(f"v_add_f32 v{F+26+k}, 1.0, v{F+26+k}")
    for k in range(4):
        a(f"v_rcp_f32 v{F+26+k}, v{F+26+k}")
    for k in range(4):
        a(f"v_mul_f32 v{P0+k}, v{P0+k}, v{F+26+k}")
    for k in range(4):
        a(f"v_cvt_pk_bf16_f32 v{P0+k}, v{P0+k}, v{P0+k}")
    a(f"v_lshlrev_b32 v{F+24}, 4, v{F+24}")
    setexec(0x0101010101010101)
    a(f"ds_write_b128 v{F+24}, {q(P0)} offset:{L_HACT}")
    setexec(FULL)

    a("L_qwait:")
    lds_spin("qspin", L_QFLAG, 4, qsleep)
    stamp("q_ok")
    BT, D0, D1, X, P = F, F + 16, F + 20, F + 24, F + 25
    for t in range(4):
        a(f"ds_read_b128 {q(BT+4*t)}, v{bta[t]}")
    a(f"v_mov_b32 v{X}, 0xff800000")
    a("s_waitcnt lgkmcnt(0)")
    for t in range(4):
        c0 = "0" if t == 0 else q(D0)
        c1 = "0" if t == 0 else q(D1)
        a(f"v_mfma_f32_16x16x32_bf16 {q(D0)}, {q(K+4*t)}, {q(BT+4*t)}, {c0}")
        a(f"v_mfma_f32_16x16x32_bf16 {q(D1)}, {q(K+16+4*t)}, {q(BT+4*t)}, {c1}")
    a(f"s_mul_i32 s{sT0}, s{sW}, 528")
    a(f"v_mov_b32 v{T+4}, s{sT0}")
    a(f"v_and_b32 v{T+3}, 7, v{vL}")
    a(f"v_lshl_add_u32 v{T+3}, v{vg}, 3, v{T+3}")
    a(f"v_lshl_add_u32 v{T+3}, v{T+3}, 4, s{sT0}")
    a(f"v_add_f32_dpp v{X}, v{D0+1}, v{D0} row_shl:4 row_mask:0xf bank_mask:0x1")
    a(f"v_add_f32_dpp v{X}, v{D1}, v{D1+1} row_shr:4 row_mask:0xf bank_mask:0x2")
    a(f"v_add_f32_dpp v{X}, v{D0+2}, v{X} row_shl:8 row_mask:0xf bank_mask:0x1")
    a(f"v_add_f32_dpp v{X}, v{D1+2}, v{X} row_shl:4 row_mask:0xf bank_mask:0x2")
    a(f"v_add_f32_dpp v{X}, v{D0+3}, v{X} row_shl:12 row_mask:0xf bank_mask:0x1")
    a(f"v_add_f32_dpp v{X}, v{D1+3}, v{X} row_shl:8 row_mask:0xf bank_mask:0x2")
    a(f"v_cvt_pk_bf16_f32 v{X}, v{X}, v{X}")
    a(f"v_and_b32 v{X}, s{sHI}, v{X}")
    a(f"v_mul_f32 v{X}, s{sSC}, v{X}")
    a(f"v_cvt_pk_bf16_f32 v{X}, v{X}, v{X}")
    a(f"v_and_b32 v{X}, s{sHI}, v{X}")
    a(f"v_mov_b32 v{vMx}, v{X}")
    wave_reduce("v_max_f32", vMx)
    a(f"v_readlane_b32 s{sT2}, v{vMx}, 63")
    setexec(1 << 63)
    a(f"ds_write_b32 v{T+4}, v{vMx} offset:{L_OPART + 512}")
    setexec(FULL)
    a(f"v_subrev_f32 v{X}, s{sT2}, v{X}")
    a(f"v_mul_f32 v{X}, s{sL2E}, v{X}")
    a(f"v_exp_f32 v{X}, v{X}")
    a(f"v_mov_b32 v{F+28}, 0")
    a(f"v_mov_b32 v{F+29}, 1")
    setexec(1)
    a("s_waitcnt lgkmcnt(0)")
    a(f"ds_add_u32 v{F+28}, v{F+29} offset:{L_MC}")
    setexec(FULL)
    a(f"v_cvt_pk_bf16_f32 v{P}, v{X}, v{X}")
    stamp("qk_ok")
    WOt, W2t = K, K + 16

    def pv(hi):
        Bp, Dpv = [F, F + 4], F + 8
        for n in range(8):
            b = Bp[n & 1]
            for jj in range(4):
                a(f"v_and_b32_dpp v{b+jj}, v{P}, v{vM+jj} row_newbcast:{n} row_mask:0xf bank_mask:0xf")
            if n < 6:
                a(f"v_add_f32_dpp v{X}, v{X}, v{X} {RED[n]}")
            if n == 6:
                setexec(1 << 63)
                a(f"ds_write_b32 v{T+4}, v{X} offset:{L_OPART + 516}")
                setexec(FULL)
            if hi:
                a(f"s_waitcnt vmcnt({7-n})")
            elif n == 0:
                a("s_waitcnt vmcnt(6)")
            c = "0" if n == 0 else q(Dpv)
            a(f"v_mfma_f32_16x16x32_bf16 {q(Dpv)}, {q(V+4*n)}, {q(b)}, {c}")
        a(f"v_mov_b32 v{T}, 0")
        a(f"v_mov_b32 v{T+4}, 1")
        setexec(0x00ff00ff00ff00ff)
        a(f"ds_write_b128 v{T+3}, {q(Dpv)} offset:{L_OPART}")
        setexec(1)
        a("s_waitcnt lgkmcnt(0)")
        a(f"ds_add_u32 v{T}, v{T+4} offset:{L_OCNT}")
        setexec(FULL)
        stamp("pvend")

    a(f"s_cmp_lt_u32 s{sW}, 8")
    a("s_cbranch_scc1 L_lowpv")
    a(f"s_cmp_eq_u32 s{sW}, 15")
    a("s_cbranch_scc0 L_nofac")
    a(f"s_lshl3_add_u32 s{sT2}, s{sH}, s{sJ}")
    a(f"s_lshl_b32 s{sT2}, s{sT2}, 10")
    a(f"s_add_u32 s{sT2}, s{sT2}, {MBA}")
    a(f"v_add_u32 v{T+6}, s{sT2}, v{vVo}")
    a(f"v_mul_u32_u24 v{T+5}, 528, v{vr}")
    lds_spin("mspin", L_MC, 16, 0)
    a(f"ds_read_b32 v{T+7}, v{T+5} offset:{L_OPART + 512}")
    a("s_waitcnt lgkmcnt(0)")
    a(f"v_mov_b32 v{vMx}, v{T+7}")
    for m in RED[:4]:
        a(f"v_max_f32_dpp v{vMx}, v{vMx}, v{vMx} {m}")
    a(f"v_sub_f32 v{T+7}, v{T+7}, v{vMx}")
    a(f"v_mul_f32 v{T+7}, s{sL2E}, v{T+7}")
    a(f"v_exp_f32 v{T+7}, v{T+7}")
    for w in range(16):
        a(f"v_mov_b32_dpp v{K+w}, v{T+7} row_newbcast:{w} row_mask:0xf bank_mask:0xf")
    a("L_nofac:")
    pv(True)
    a(f"s_cmp_eq_u32 s{sW}, 15")
    a(f"s_cbranch_scc0 {EXIT}")
    if prio:
        a("s_setprio 3")
    lds_spin("ospin", L_OCNT, 16, 0)
    stamp("pv_ok")
    setexec((1 << 33) - 1)
    for half in range(2):
        for k in range(8):
            a(f"ds_read_b128 {q(V+4*k)}, v{vVo} offset:{L_OPART + (8*half+k)*528}")
        for k in range(8):
            w = 8 * half + k
            sel = "op_sel:[1,0,0] op_sel_hi:[1,1,1]" if w & 1 else "op_sel_hi:[0,1,1]"
            fp = q(K + (w & ~1), 2)
            a(f"s_waitcnt lgkmcnt({7-k})")
            for e in (0, 2):
                if w == 0:
                    a(f"v_pk_mul_f32 {q(F+e,2)}, {fp}, {q(V+e,2)} op_sel_hi:[0,1]")
                else:
                    a(f"v_pk_fma_f32 {q(F+e,2)}, {fp}, {q(V+4*k+e,2)}, {q(F+e,2)} {sel}")
    setexec(1 << 32)
    a(f"v_mov_b32 v{F}, v{vMx}")
    a(f"v_mov_b32 v{F+2}, s{sXcc}")
    setexec((1 << 33) - 1)
    embed(F)
    a(f"buffer_store_dwordx4 {q(F)}, v{T+6}, {sq(sMB)}, 0 offen {pubAflag}")
    a(f"ds_write_b128 v{vVo}, {q(F)} offset:{L_MA}")
    setexec(1)
    a("s_waitcnt lgkmcnt(0)")
    a(f"ds_write_b32 v{T}, v{T+4} offset:{L_AF}")
    stamp("pubA")
    a("s_waitcnt lgkmcnt(0)")
    a("s_barrier")
    a("s_barrier")
    a(f"s_branch {EXIT}" if prof else "s_endpgm")

    a("L_lowpv:")
    a("s_waitcnt lgkmcnt(0)")
    a("s_barrier")
    a(f"buffer_load_dwordx4 {q(WOt)}, v{vWo}, {sq(sWO)}, 0 offen {flag}")
    a(f"buffer_load_dwordx4 {q(WOt+4)}, v{vWo}, {sq(sWO)}, s{sX0} offen {flag}")
    a(f"buffer_load_dwordx4 {q(WOt+8)}, v{vWo}, {sq(sWO)}, s{sX1} offen {flag}")
    a(f"buffer_load_dwordx4 {q(WOt+12)}, v{vWo}, {sq(sWO)}, s{sO3} offen {flag}")
    a(f"buffer_load_dwordx4 {q(W2t)}, v{vW2}, {sq(sW2)}, 0 offen {flag}")
    a(f"buffer_load_dwordx4 {q(W2t+4)}, v{vW2}, {sq(sW2)}, s{sX0} offen {flag}")
    stamp("wiss")
    a(f"v_bfe_u32 v{T+7}, v{vL}, 3, 1")
    a(f"v_lshlrev_b32 v{T+7}, 6, v{T+7}")
    a(f"s_lshl_b32 s{sT1}, s{sW}, 3")
    a(f"v_add3_u32 v{T+7}, v{T+7}, s{sT1}, v{vg}")
    a(f"v_lshlrev_b32 v{T+7}, 2, v{T+7}")
    a(f"v_add_u32 v{T+7}, {L_HACT}, v{T+7}")
    a(f"ds_read2_b32 {q(vHF,2)}, v{T+7} offset0:0 offset1:4")
    pv(False)
    vML, vPA, vMSG, AO = T + 5, T + 6, T + 7, P0
    Bf = F + 24
    for t in range(2):
        for jj in range(4):
            a(f"v_and_b32 v{Bf+4*t+jj}, v{vHF+t}, v{vM+jj}")
    a(f"s_lshl3_add_u32 s{sT2}, s{sH}, s{sW}")
    a(f"s_lshl_b32 s{sT2}, s{sT2}, 10")
    a(f"s_add_u32 s{sT2}, s{sT2}, {MBA}")
    a(f"v_add_u32 v{vPA}, s{sT2}, v{vVo}")
    PAs = [V + 16 + 4 * k for k in range(depthA)]
    if firstN is None:
        setexec((1 << 33) - 1)
        a(f"buffer_load_dwordx4 {q(PAs[0])}, v{vPA}, {sq(sMB)}, 0 offen sc1")
        setexec(FULL)
    a(f"s_mul_i32 s{sT0}, s{sW}, 528")
    a(f"v_add_u32 v{vMSG}, s{sT0}, v{vVo}")
    a(f"s_lshr_b32 s{sT0}, s{sW}, 1")
    a(f"s_lshl_b32 s{sT0}, s{sT0}, 7")
    a(f"s_and_b32 s{sT1}, s{sW}, 1")
    a(f"s_lshl3_add_u32 s{sT0}, s{sT1}, s{sT0}")
    a(f"v_bfe_u32 v{T+4}, v{vL}, 3, 1")
    a(f"v_mul_u32_u24 v{vML}, {4*528}, v{T+4}")
    a(f"v_lshl_add_u32 v{T}, v{vg}, 4, v{vML}")
    a(f"v_add_u32 v{T}, s{sT0}, v{T}")
    for s_ in range(4):
        a(f"v_add_u32 v{AO+s_}, {L_MSG + 528*s_}, v{T}")
    a(f"v_lshlrev_b32 v{T+4}, 3, v{T+4}")
    a(f"ds_read_b64 {q(G,2)}, v{T+4} offset:{L_GATE}")
    a(f"s_lshl_b32 s{sT0}, s{sW}, 10")
    a(f"v_add_u32 v{vYW}, s{sT0}, v{vVo}")
    a(f"v_and_b32 v{vP0a}, 7, v{vL}")
    a(f"v_mul_u32_u24 v{vP0a}, 528, v{vP0a}")
    a(f"s_mov_b32 s{sExB}, -1")
    a(f"s_cmp_eq_u32 s{sOdd}, 0")
    a(f"s_cselect_b32 s{sExB+1}, 0xffff, 0")
    a(f"s_and_b32 s{sT0}, s{sH}, 1")
    a(f"s_mul_i32 s{sT0}, s{sT0}, 640")
    a(f"s_mul_i32 s{sT1}, s{sJ}, 80")
    a(f"s_add_u32 s{sT0}, s{sT0}, s{sT1}")
    a(f"s_lshl4_add_u32 s{sT0}, s{sOdd}, s{sT0}")
    a(f"s_lshr_b32 s{sT1}, s{sH}, 1")
    a(f"s_lshl_b32 s{sT1}, s{sT1}, 5")
    a(f"s_add_u32 s{sT0}, s{sT0}, s{sT1}")
    a(f"v_add_lshl_u32 v{vOUT}, s{sT0}, v{vL}, 1")
    a(f"s_mul_i32 s{sT0}, s{sJ}, {6*4096}")
    a(f"s_add_u32 s{sT0}, s{sT0}, {MBB}")
    a(f"s_lshl_b32 s{sT1}, s{sH}, 12")
    a(f"s_add_u32 s{sT1}, s{sT0}, s{sT1}")
    a(f"v_add_u32 v{vPB}, s{sT1}, v{vVo}")
    a(f"s_cmp_eq_u32 s{sW}, 0")
    a("s_cbranch_scc0 L_addrok")
    a(f"s_lshl_b32 s{sT1}, s{sH}, 7")
    a(f"s_add_u32 s{sT0}, s{sT0}, s{sT1}")
    a(f"v_lshrrev_b32 v{T+3}, 3, v{vL}")
    a(f"v_lshlrev_b32 v{T+3}, 12, v{T+3}")
    a(f"v_and_b32 v{T+4}, 7, v{vL}")
    a(f"v_lshl_add_u32 v{T+3}, v{T+4}, 4, v{T+3}")
    a(f"v_add_u32 v{vPB}, s{sT0}, v{T+3}")
    a("L_addrok:")

    setexec((1 << 33) - 1)
    a(f"s_mov_b32 s{sCnt}, {spin}")
    a(f"s_mov_b32 s{sFb}, {NFB - 1}")
    if firstN is not None:
        a(f"s_waitcnt vmcnt({firstN})")
        a(f"buffer_load_dwordx4 {q(PAs[0])}, v{vPA}, {sq(sMB)}, 0 offen sc1")
    for k in range(1, depthA):
        a(f"buffer_load_dwordx4 {q(PAs[k])}, v{vPA}, {sq(sMB)}, 0 offen sc1")
        if k + 1 < depthA:
            a(f"s_sleep {sleepA}")
    if prof and "A1st" in prof:
        a(f"s_waitcnt vmcnt({depthA-1})")
        stamp("A1st")
    a("L_pA:")
    for k in range(depthA):
        a(f"s_waitcnt vmcnt({depthA-1})")
        tagbits(PAs[k], T + 3, T + 4)
        a(f"v_cmp_ne_u32 vcc, s{sN}, v{T+3}")
        a(f"s_cbranch_vccz L_pAok{k}")
        a(f"buffer_load_dwordx4 {q(PAs[k])}, v{vPA}, {sq(sMB)}, 0 offen sc1")
    a(f"s_sub_u32 s{sCnt}, s{sCnt}, 1")
    a("s_cbranch_scc1 L_pAok0")
    a(f"s_sub_u32 s{sFb}, s{sFb}, 1")
    a("s_cbranch_scc1 L_pAfb")
    a("s_branch L_pA")
    PA = F
    for k in range(depthA):
        a(f"L_pAok{k}:")
        untag(PAs[k], 4, PA)
        if k + 1 < depthA:
            a("s_branch L_pAw")
    a("L_pAw:")
    stamp("Adet")
    a(f"ds_write_b128 v{vMSG}, {q(PA)} offset:{L_MSG}")
    setexec(FULL)
    a("s_waitcnt lgkmcnt(0)")
    a("s_barrier")
    stamp("A_ok")
    OS, ML, Dy = F, K + 24, V + 28
    for s_ in range(4):
        a(f"ds_read_b64 {q(ML+2*s_,2)}, v{vML} offset:{L_MSG + 528*s_ + 512}")
    for s_ in range(4):
        a(f"ds_read2_b64 {q(OS+4*s_)}, v{AO+s_} offset0:0 offset1:8")
    a(f"ds_read_b32 v{vW2}, v{vP0a} offset:{L_MSG + 520}")
    a(f"v_mfma_f32_16x16x32_bf16 {q(Dy)}, {q(W2t)}, {q(Bf)}, 0")
    a(f"v_mfma_f32_16x16x32_bf16 {q(Dy)}, {q(W2t+4)}, {q(Bf+4)}, {q(Dy)}")
    a("s_waitcnt lgkmcnt(5)")
    fs = [F + 16, F + 18, F + 20, F + 22]
    Mx, Ls, oo = F + 17, F + 24, F + 26
    a(f"v_max3_f32 v{Mx}, v{ML}, v{ML+2}, v{ML+4}")
    a(f"v_max_f32 v{Mx}, v{Mx}, v{ML+6}")
    for s_ in range(4):
        a(f"v_sub_f32 v{fs[s_]}, v{ML+2*s_}, v{Mx}")
    for s_ in range(4):
        a(f"v_mul_f32 v{fs[s_]}, s{sL2E}, v{fs[s_]}")
    for s_ in range(4):
        a(f"v_exp_f32 v{fs[s_]}, v{fs[s_]}")
    for k in range(4):
        a(f"v_mul_f32 v{Dy+k}, v{G+1}, v{Dy+k}")
    a(f"v_mul_f32 v{Ls}, v{fs[0]}, v{ML+1}")
    for s_ in range(1, 4):
        a(f"v_fmac_f32 v{Ls}, v{fs[s_]}, v{ML+2*s_+1}")
    a(f"v_rcp_f32 v{Ls}, v{Ls}")
    a("s_waitcnt lgkmcnt(0)")
    for e in (0, 2):
        a(f"v_pk_mul_f32 {q(oo+e,2)}, {q(fs[0],2)}, {q(OS+e,2)} op_sel_hi:[0,1]")
    a(f"v_mul_f32 v{Ls}, v{Ls}, v{G}")
    for s_ in range(1, 4):
        for e in (0, 2):
            a(f"v_pk_fma_f32 {q(oo+e,2)}, {q(fs[s_],2)}, {q(OS+4*s_+e,2)}, {q(oo+e,2)} op_sel_hi:[0,1,1]")
    for e in (0, 2):
        a(f"v_pk_mul_f32 {q(oo+e,2)}, {q(Ls,2)}, {q(oo+e,2)} op_sel_hi:[0,1]")
    for e in range(4):
        a(f"v_cvt_pk_bf16_f32 v{oo+e}, v{oo+e}, v{oo+e}")
    tau_of = [0, 2, 1, 3]
    for e in range(5):
        if e < 4:
            for jj in range(4):
                a(f"v_and_b32 v{V+4*e+jj}, v{oo+e}, v{vM+jj}")
        if e > 0:
            a(f"v_mfma_f32_16x16x32_bf16 {q(Dy)}, {q(WOt+4*tau_of[e-1])}, {q(V+4*(e-1))}, {q(Dy)}")
    a(f"v_cmp_ne_u32 vcc, s{sXcc}, v{vW2}")
    a("s_cmp_lg_u64 vcc, 0")
    a(f"s_cselect_b32 s{sRem}, 1, 0")
    a(f"ds_write_b128 v{vYW}, {q(Dy)} offset:{L_YPART}")
    a("s_waitcnt lgkmcnt(0)")
    a("s_barrier")
    stamp("y_ok")
    a(f"s_cmp_eq_u32 s{sW}, 0")
    a("s_cbranch_scc0 L_notpub")
    a(f"s_mov_b64 exec, s[{sExB}:{sExB+1}]")
    lds_sum16(F, V, vVo, L_YPART, 1024, halves=1)
    embed(F)
    a(f"buffer_store_dwordx4 {q(F)}, v{vPB}, {sq(sMB)}, 0 offen sc1")
    stamp("pubB")
    a(f"s_cmp_eq_u32 s{sRem}, 0")
    a("s_cbranch_scc0 L_remA")
    if prof:
        a("s_branch L_done")
    a("L_exit:")
    a("s_endpgm")
    a("L_notpub:")
    a(f"s_cmp_eq_u32 s{sW}, 1")
    a(f"s_cbranch_scc0 {EXIT}")
    a(f"s_lshl_b32 s{sT0}, s{sOdd}, 1")
    a(f"s_sub_u32 s{sT0}, 6, s{sT0}")
    a(f"s_cmp_lt_u32 s{sH}, s{sT0}")
    a(f"s_cbranch_scc0 {EXIT}")

    a(f"s_mov_b32 s{sCnt}, {spin}")
    PBs = [K, K + 16, V][:depthB]
    tb = F
    def pollB_issue(r):
        for k in range(4):
            a(f"buffer_load_dwordx4 {q(r+4*k)}, v{vPB}, {sq(sMB)}, 0 offen offset:{1024*k} sc1")
    for d in range(depthB):
        pollB_issue(PBs[d])
        if d + 1 < depthB and sleepB:
            a(f"s_sleep {sleepB}")
    a("L_pB:")
    for d in range(depthB):
        r = PBs[d]
        a(f"s_waitcnt vmcnt({4*(depthB-1)})")
        for k in range(4):
            a(f"v_perm_b32 v{tb+2*k}, v{r+4*k+1}, v{r+4*k}, s{sC}")
            a(f"v_perm_b32 v{tb+1+2*k}, v{r+4*k+3}, v{r+4*k+2}, s{sC+1}")
        for k in range(4):
            a(f"v_or_b32 v{tb+2*k}, v{tb+2*k}, v{tb+1+2*k}")
        for k in range(4):
            a(f"v_xor_b32 v{tb+2*k}, s{sN}, v{tb+2*k}")
        a(f"v_or3_b32 v{tb}, v{tb}, v{tb+2}, v{tb+4}")
        a(f"v_or_b32 v{tb}, v{tb}, v{tb+6}")
        a(f"v_cmp_ne_u32 vcc, 0, v{tb}")
        a(f"s_cbranch_vccz L_pBok{d}")
        pollB_issue(r)
    a(f"s_sub_u32 s{sCnt}, s{sCnt}, 1")
    a("s_cbranch_scc0 L_pB")
    R = F + 8
    for d in range(depthB):
        a(f"L_pBok{d}:")
        untag(PBs[d], 16, R)
        if d + 1 < depthB:
            a("s_branch L_pBw")
    a("L_pBw:")
    stamp("Bdet")
    a(f"v_pk_add_f32 {q(R,2)}, {q(R,2)}, {q(R+4,2)}")
    a(f"v_pk_add_f32 {q(R+2,2)}, {q(R+2,2)}, {q(R+6,2)}")
    a(f"v_pk_add_f32 {q(R+8,2)}, {q(R+8,2)}, {q(R+12,2)}")
    a(f"v_pk_add_f32 {q(R+10,2)}, {q(R+10,2)}, {q(R+14,2)}")
    a(f"v_pk_add_f32 {q(R,2)}, {q(R,2)}, {q(R+8,2)}")
    a(f"v_pk_add_f32 {q(R+2,2)}, {q(R+2,2)}, {q(R+10,2)}")
    for k in range(4):
        a(f"v_add_f32_dpp v{R+k}, v{R+k}, v{R+k} row_ror:8 row_mask:0xf bank_mask:0xf")
    for sw in ("v_permlane16_swap_b32", "v_permlane32_swap_b32"):
        for k in range(4):
            a(f"v_mov_b32 v{R+4+k}, v{R+k}")
        for k in range(4):
            a(f"{sw} v{R+k}, v{R+4+k}")
        for k in range(4):
            a(f"v_add_f32 v{R+k}, v{R+k}, v{R+4+k}")
    for k in range(4):
        a(f"v_cvt_pk_bf16_f32 v{R+k}, v{R+k}, v{R+k}")
    setexec(0xff)
    for k in range(4):
        a(f"buffer_store_short v{R+k}, v{vOUT}, {sq(sOUT)}, 0 offen offset:{16*k} {outflag}")
    stamp("out")
    a("s_cmp_eq_u32 s2, 0")
    a("s_cbranch_scc0 L_done")
    setexec(1)
    a(f"v_mov_b32 v{T+4}, 0")
    a(f"buffer_store_dword v{vN}, v{T+4}, {sq(sMB)}, 0 offen sc1")
    if leak:
        a("s_memrealtime s[4:5]")
        a("s_waitcnt lgkmcnt(0)")
        a("s_sub_u32 s6, s4, s98" if leakat == "end" else "s_sub_u32 s6, s100, s98")
        a("s_min_u32 s6, s6, 20000")
        a(f"s_mul_i32 s6, s6, {leak}")
        a("L_leak:")
        a("s_memrealtime s[8:9]")
        a("s_waitcnt lgkmcnt(0)")
        a("s_sub_u32 s7, s8, s4")
        a("s_cmp_lt_u32 s7, s6")
        a("s_cbranch_scc1 L_leak")
    a("s_branch L_done")

    a("L_done:")
    if prof:
        setexec(FULL)
        a("s_waitcnt lgkmcnt(0)")
        a(f"s_lshl4_add_u32 s{sT0}, s2, s{sW}")
        a(f"s_lshl_b32 s{sT0}, s{sT0}, 7")
        a(f"s_add_u32 s26, s26, s{sT0}")
        a("s_addc_u32 s27, s27, 0")
        a("s_add_u32 s26, s26, 0x10000000")
        a("s_addc_u32 s27, s27, 0")
        for i in range(22):
            a(f"v_mov_b32 v{K+i}, s{4+i}")
        a(f"v_mov_b32 v{T}, 0")
        setexec(1)
        for k in range(6):
            a(f"global_store_dwordx4 v{T}, {q(K+4*k)}, s[26:27] offset:{16*k}")
    a("L_end:")
    a("s_endpgm")
    a("L_gate:")
    acc, t0 = F + 22, F + 11
    a(f"v_mov_b32 v{acc}, 0")
    for k in range(5):
        a(f"v_lshlrev_b32 v{t0}, 16, v{gx+k}")
        a(f"v_lshlrev_b32 v{t0+1}, 16, v{gw+k}")
        a(f"v_and_b32 v{gx+k}, s{sHI}, v{gx+k}")
        a(f"v_and_b32 v{gw+k}, s{sHI}, v{gw+k}")
        a(f"v_mul_f32 v{t0}, v{t0}, v{t0+1}")
        a(f"v_mul_f32 v{t0+1}, v{gx+k}, v{gw+k}")
        a(f"v_cvt_pk_bf16_f32 v{t0}, v{t0}, v{t0+1}")
        a(f"v_lshlrev_b32 v{t0+1}, 16, v{t0}")
        a(f"v_and_b32 v{t0}, s{sHI}, v{t0}")
        a(f"v_add_f32 v{acc}, v{acc}, v{t0+1}")
        a(f"v_add_f32 v{acc}, v{acc}, v{t0}")
    wave_reduce("v_add_f32", acc)
    a(f"v_cvt_pk_bf16_f32 v{acc}, v{acc}, v{acc}")
    a(f"v_and_b32 v{acc}, s{sHI}, v{acc}")
    a(f"v_mul_f32 v{acc}, s{sL2E}, v{acc}")
    a(f"v_exp_f32 v{acc}, -v{acc}")
    a(f"v_add_f32 v{acc}, 1.0, v{acc}")
    a(f"v_rcp_f32 v{acc}, v{acc}")
    a(f"v_cvt_pk_bf16_f32 v{acc}, v{acc}, v{acc}")
    a(f"v_and_b32 v{acc}, s{sHI}, v{acc}")
    a(f"v_sub_f32 v{t0}, 1.0, v{acc}")
    a(f"v_cvt_pk_bf16_f32 v{t0}, v{t0}, v{t0}")
    a(f"v_and_b32 v{t0}, s{sHI}, v{t0}")
    a(f"s_sub_u32 s{sT1}, s{sW}, 14")
    a(f"s_lshl_b32 s{sT1}, s{sT1}, 3")
    a(f"v_mov_b32 v{acc+1}, v{t0}")
    a(f"v_mov_b32 v{t0+1}, s{sT1}")
    setexec(1 << 63)
    a(f"ds_write_b64 v{t0+1}, {q(acc,2)} offset:{L_GATE}")
    setexec(FULL)
    a("s_branch L_nogate")
    a("L_p0fb:")
    fallback_store(F + 8, F + 26)
    a("s_branch L_p0re")
    a("L_pAfb:")
    a(f"s_mov_b32 s{sFb}, {NFB - 1}")
    setexec(FULL)
    fallback_store(F + 8, F + 16)
    a(f"v_mov_b32 v{F+16}, 0")
    a(f"ds_read_b32 v{F+17}, v{F+16} offset:{L_AF}")
    a("s_waitcnt lgkmcnt(0)")
    a(f"v_readfirstlane_b32 s{sT1}, v{F+17}")
    a(f"s_cmp_eq_u32 s{sT1}, 0")
    a("s_cbranch_scc1 L_pAfb2")
    fallback_storeA(F + 8, F + 16)
    a("L_pAfb2:")
    setexec((1 << 33) - 1)
    a("s_branch L_pA")
    a("L_remA:")
    fallback_storeA(V, V + 4)
    a("s_branch L_done" if prof else "s_endpgm")
    body = a.finish()

    head = f"""; Fused decode step: sliding-window attention (32 heads x last 2048 keys, batch 2) + SiLU FFN + sigmoid gate.
; @launch grid=(256,1,1) block=(1024,1,1) lds={LDS_BYTES}
.amdgcn_target "amdgcn-amd-amdhsa--gfx950"
.text
.globl {KN}
.p2align 12
.p2align 8
.type {KN},@function
"""
    tail = f""".section .rodata,"a"
.p2align 6
.amdhsa_kernel {KN}
  .amdhsa_next_free_vgpr 128
  .amdhsa_next_free_sgpr 102
  .amdhsa_accum_offset 128
  .amdhsa_group_segment_fixed_size 0
  .amdhsa_kernarg_size 96
  .amdhsa_user_sgpr_count 2
  .amdhsa_user_sgpr_kernarg_segment_ptr 1
  .amdhsa_system_sgpr_workgroup_id_x 1
.end_amdhsa_kernel
"""
    return head + body + tail, names, a.nnops

def write(name, **kw):
    sys.path.insert(0, "bench")
    import build
    src, names, nn = gen(**kw)
    open(f"gen/{name}.s", "w").write(src)
    build.build(f"gen/{name}.s")
    return names, nn

FINAL = dict(depthB=3, sleepB=0, qsleep=0, qearly=True)

if __name__ == "__main__":
    print(write("k15", **FINAL), LDS_BYTES)
    for hm in (1, 2, 3):
        write(f"k15_h{hm}", hmap=hm, **FINAL)
    write("S15", prof=["out"], **FINAL)
    write("L15", leak=10, **FINAL)
```
